```python
import torch

def _softmax(x, axis=-1):
    return torch.softmax(x, dim=axis)
def _gelu(x):
    return torch.nn.functional.gelu(x, approximate="tanh")
def _silu(x):
    return torch.nn.functional.silu(x)
def _sigmoid(x):
    return torch.sigmoid(x)
def _layernorm(x, axis=-1, eps=1e-5):
    m = x.mean(dim=axis, keepdim=True)
    v = x.var(dim=axis, keepdim=True, unbiased=False)
    return (x - m) / torch.sqrt(v + eps)
def _scatter_add(tgt, idx, src, axis=0):
    return tgt.clone().index_add_(axis, idx, src)
def _segment_sum(src, seg, n):
    out = torch.zeros((n,) + src.shape[1:], dtype=src.dtype)
    return out.index_add_(0, seg, src)
def _pad(x, pw):
    flat = tuple(v for pair in reversed(pw) for v in pair)
    return torch.nn.functional.pad(x, flat)

kernel_name = 'standalone__mha_block_cached__near_ridge'

def setup_inputs():

    _w = (lambda a: (lambda t: t.to(torch.bfloat16) if t.is_floating_point() else t)(torch.as_tensor(a)))
    B, Sq, D = 8, 96, 1024
    H, Sk, Dh = 32, 512, 128
    return {
        "x": _w((lambda *s: torch.randn(*s, dtype=torch.bfloat16) * 0.8)(B, Sq, D)),
        "k_cache": _w((lambda *s: torch.randn(*s, dtype=torch.bfloat16) * 0.8)(B, H, Sk, Dh)),
        "v_cache": _w((lambda *s: torch.randn(*s, dtype=torch.bfloat16) * 0.05)(B, H, Sk, Dh)),
        "wq": _w((lambda *s: torch.randn(*s, dtype=torch.bfloat16) * 0.8)(D, H * Dh) * (D ** -0.5)),
        "wo": _w((lambda *s: torch.randn(*s, dtype=torch.bfloat16) * 0.05)(H * Dh, D) * ((H * Dh) ** -0.5)),
    }

def reference(x, k_cache, v_cache, wq, wo):
    B, Sq, D = x.shape
    H, Dh = 32, 128
    q = (lambda x, *d: x.permute(*d))((x @ wq).reshape(B, Sq, H, Dh), 0, 2, 1, 3)
    scores = torch.einsum("bhqd,bhkd->bhqk", q, k_cache) * (Dh ** -0.5)
    p = _softmax(scores, axis=-1)
    o = torch.einsum("bhqk,bhkd->bhqd", p, v_cache)
    return (lambda x, *d: x.permute(*d))(o, 0, 2, 1, 3).reshape(B, Sq, H * Dh) @ wo
```

```python
class Asm:
    def __init__(self):
        self.lines = []
        self.nlabel = 0
    def __call__(self, s):
        for l in s.strip("\n").split("\n"):
            self.lines.append("    " + l.strip() if not l.strip().endswith(":") else l.strip())
    def label(self, name):
        self.lines.append(name + ":")
    def newlabel(self, p="L"):
        self.nlabel += 1
        return f"{p}_{self.nlabel}"
    def text(self):
        return "\n".join(self.lines) + "\n"

HEADER = """; Kernarg layout for this problem (64 bytes, ptrs only, base s[0:1]):
"""

def kernel_text(name, body, nfv=512, accum=256, sgpr=102, extra_dirs=""):
    return f""".text
.globl {name}
.p2align 8
.type {name},@function
{name}:
{body}
.section .rodata,"a"
.p2align 6
.amdhsa_kernel {name}
  .amdhsa_next_free_vgpr {nfv}
  .amdhsa_next_free_sgpr {sgpr}
  .amdhsa_accum_offset {accum}
  .amdhsa_group_segment_fixed_size 0
  .amdhsa_kernarg_size 64
  .amdhsa_user_sgpr_count 2
  .amdhsa_user_sgpr_kernarg_segment_ptr 1
  .amdhsa_system_sgpr_workgroup_id_x 1
{extra_dirs}.end_amdhsa_kernel
"""

def file_text(launches, kernels):
    s = HEADER
    if len(launches) == 1 and launches[0][0] == "standalone__mha_block_cached__near_ridge_kernel":
        n, g, b, l = launches[0]
        s += f"; @launch grid=({g},1,1) block=({b},1,1) lds={l}\n"
    else:
        for n, g, b, l in launches:
            s += f"; @launch kernel={n} grid=({g},1,1) block=({b},1,1) lds={l}\n"
    s += '.amdgcn_target "amdgcn-amd-amdhsa--gfx950"\n'
    s += "".join(kernels)
    return s

SZ_X = 8*96*1024*2
SZ_KV = 8*32*512*128*2
SZ_W = 1024*4096*2
SZ_OUT = SZ_X
SZ_WS = 268435456

def srd(a, dst, lo, size):
    a(f"""s_mov_b32 s{dst}, s{lo}
    s_mov_b32 s{dst+1}, s{lo+1}
    s_mov_b32 s{dst+2}, {size}
    s_mov_b32 s{dst+3}, 0x00020000""")

class Stamps:
    def __init__(self, a, vreg, stmp):
        self.a = a; self.v = vreg; self.s = stmp; self.n = 0
    def init(self):
        self.a(f"v_mov_b32 v{self.v}, 0")
    def mark(self):
        a = self.a; s = self.s
        a(f"""s_memrealtime s[{s}:{s+1}]
        s_memtime s[{s+2}:{s+3}]
        s_waitcnt lgkmcnt(0)
        v_writelane_b32 v{self.v}, s{s}, {2*self.n}
        v_writelane_b32 v{self.v}, s{s+2}, {2*self.n+1}""")
        self.n += 1
    def store(self, vtmp, srd_ws, s_slot_off):
        a = self.a
        a(f"""v_mbcnt_lo_u32_b32 v{vtmp}, -1, 0
        v_mbcnt_hi_u32_b32 v{vtmp}, -1, v{vtmp}
        v_lshlrev_b32 v{vtmp}, 2, v{vtmp}
        buffer_store_dword v{self.v}, v{vtmp}, s[{srd_ws}:{srd_ws+3}], s{s_slot_off} offen
        s_waitcnt vmcnt(0)""")
```

```python
import re

REG_RE = re.compile(r'^(-|\|)?([vas])(\d+)\|?$')
RNG_RE = re.compile(r'^(-|\|)?([vas])\[(\d+):(\d+)\]\|?$')
TRANS = ("v_exp_f32", "v_log_f32", "v_rcp_f32", "v_rsq_f32", "v_sqrt_f32")


def regs_of(tok):
    tok = tok.strip()
    m = REG_RE.match(tok)
    if m:
        return [(m.group(2), int(m.group(3)))]
    m = RNG_RE.match(tok)
    if m:
        return [(m.group(2), i) for i in range(int(m.group(3)), int(m.group(4)) + 1)]
    if tok == "m0":
        return [("m0", 0)]
    if tok == "vcc":
        return [("vcc", 0)]
    return []


class Ins:
    __slots__ = ("text", "kind", "rd", "wr", "srcc", "ab", "passes", "wide_store", "lds_dma", "trans", "states", "dreg")


def parse(text):
    t = text.split(";")[0].strip()
    I = Ins()
    I.text = text
    I.rd = []; I.wr = []; I.srcc = []; I.ab = []; I.passes = 0; I.wide_store = False; I.lds_dma = False
    I.trans = False; I.states = 1; I.dreg = None
    parts = t.split(None, 1)
    mn = parts[0]
    rest = parts[1] if len(parts) > 1 else ""
    ops = [o.strip() for o in rest.split(",")] if rest else []
    mods = []
    if ops:
        lp = ops[-1].split()
        if lp:
            ops[-1] = lp[0]
            mods = lp[1:]
    R = [regs_of(o) for o in ops]
    if mn.startswith("v_mfma"):
        I.kind = "mfma"
        I.passes = 8 if "32x32x16" in mn else 4
        I.wr = R[0]; I.ab = R[1] + R[2]; I.srcc = R[3]; I.rd = I.ab + I.srcc
        I.dreg = (tuple(R[0]))
    elif mn.startswith("v_permlane32_swap") or mn.startswith("v_permlane16_swap"):
        I.kind = "perm"; I.rd = R[0] + R[1]; I.wr = R[0] + R[1]
    elif mn.startswith("v_readfirstlane") or mn.startswith("v_readlane"):
        I.kind = "rdlane"; I.wr = R[0]; I.rd = sum(R[1:], [])
    elif mn.startswith("v_"):
        I.kind = "valu"; I.wr = R[0]; I.rd = sum(R[1:], [])
        if mn.startswith("v_fmac") or mn.startswith("v_writelane") or mn.startswith("v_mac"):
            I.rd = I.rd + R[0]
        if mn.startswith("v_cndmask") and len(ops) == 3:
            I.rd = I.rd + [("vcc", 0)]
        I.trans = mn.startswith(TRANS)
    elif mn.startswith("ds_read"):
        I.kind = "dsr"; I.wr = R[0]; I.rd = R[1]
    elif mn.startswith("ds_write"):
        I.kind = "dsw"; I.rd = sum(R, [])
    elif mn.startswith("buffer_load"):
        if "lds" in mods:
            I.kind = "dma"; I.rd = sum(R, []) + [("m0", 0)]; I.lds_dma = True
        else:
            I.kind = "vmld"; I.wr = R[0]; I.rd = sum(R[1:], [])
    elif mn.startswith("buffer_store") or mn.startswith("buffer_atomic"):
        I.kind = "vmst"; I.rd = sum(R, [])
        I.wide_store = ("x4" in mn or "x3" in mn)
        I.srcc = R[0]
    elif mn == "s_nop":
        I.kind = "nop"; I.states = int(ops[0], 0) + 1
    elif mn == "s_waitcnt":
        I.kind = "wait"
    elif mn.startswith("s_load") or mn in ("s_memtime", "s_memrealtime"):
        I.kind = "smem"; I.wr = R[0]; I.rd = sum(R[1:], [])
    elif mn.startswith("s_cmp") or mn.startswith("s_cbranch") or mn in ("s_barrier", "s_branch", "s_endpgm", "s_setprio", "s_sleep"):
        I.kind = "sctl"; I.rd = sum(R, [])
    elif mn.startswith("s_"):
        I.kind = "salu"; I.wr = R[0]; I.rd = sum(R[1:], [])
    else:
        raise ValueError("unknown instr " + text)
    return I


class Em:
    def __init__(self):
        self.out = []
        self.hist = []
        self.vm = []
        self.lg = []
        self.vmseq = 0
        self.lgseq = 0
        self.nnop = 0
        self.ninstr = 0
        self.nlabel = 0
        self.smem_pending = False

    def raw(self, line):
        self.out.append(line)

    def label(self, name):
        self.out.append(name + ":")

    def comment(self, s):
        self.out.append("    ; " + s)

    def _push(self, I):
        self.out.append("    " + I.text)
        self.hist.append(I)
        if len(self.hist) > 40:
            self.hist.pop(0)
        self.ninstr += 1

    def _need(self, I):
        need = 0
        dist = 0
        rd = set(I.rd); wr = set(I.wr)
        valu_like = I.kind in ("valu", "perm", "rdlane")
        for P in reversed(self.hist):
            req = 0
            pw = set(P.wr)
            pvalu = P.kind in ("valu", "perm", "rdlane")
            if pvalu:
                vw = {r for r in pw if r[0] in "va"}
                sw = {r for r in pw if r[0] in ("s", "vcc")}
                if I.kind == "mfma" and vw & rd:
                    req = max(req, 2)
                if I.kind == "rdlane" and vw & rd:
                    req = max(req, 1)
                if I.kind == "perm" and vw & rd:
                    req = max(req, 2)
                if P.trans and (vw & rd) and I.kind != "wait":
                    req = max(req, 1)
                if sw & rd:
                    if valu_like:
                        req = max(req, 4 if I.kind == "rdlane" else 2)
                    if I.kind in ("dma", "vmld", "vmst"):
                        req = max(req, 5)
            if P.kind == "mfma":
                big = 12 if P.passes == 8 else 8
                if I.kind == "mfma":
                    if pw & set(I.ab):
                        req = max(req, big)
                    if pw & set(I.srcc):
                        if tuple(I.srcc) != P.dreg or I.passes != P.passes:
                            req = max(req, 10 if P.passes == 8 else 6)
                    elif pw & wr:
                        req = max(req, big)
                else:
                    if pw & (rd | wr):
                        req = max(req, big)
                    if valu_like and set(P.srcc) & wr:
                        req = max(req, 7 if P.passes == 8 else 3)
            if P.kind == "salu" and ("m0", 0) in pw and I.kind == "dma":
                req = max(req, 1)
            if P.kind == "vmst" and P.wide_store and set(P.srcc) & wr:
                req = max(req, 2)
            if P.kind == "dsw" and valu_like and False:
                pass
            if req > dist:
                need = max(need, req - dist)
            dist += P.states
            if dist > 24:
                break
        return need

    def _autowait(self, I):
        touch = set(I.rd) | set(I.wr)
        vmn = None; lgn = None
        for idx, (seq, d) in enumerate(self.vm):
            if d & touch:
                vmn = len(self.vm) - idx - 1
        for idx, (seq, d) in enumerate(self.lg):
            if d & touch:
                lgn = len(self.lg) - idx - 1
        if vmn is not None or lgn is not None:
            self.wait(vm=vmn, lg=lgn)

    def wait(self, vm=None, lg=None):
        s = []
        if vm is not None and vm < len(self.vm):
            n = min(vm, 63)
            s.append(f"vmcnt({n})")
            self.vm = self.vm[len(self.vm) - n:] if n else []
        if lg is not None and lg < len(self.lg):
            n = min(lg, 15)
            if self.smem_pending:
                n = 0
            s.append(f"lgkmcnt({n})")
            self.lg = self.lg[len(self.lg) - n:] if n else []
            if n == 0:
                self.smem_pending = False
        if s:
            self._push(parse("s_waitcnt " + " ".join(s)))

    def __call__(self, text):
        for l in text.strip("\n").split("\n"):
            l = l.strip()
            if not l or l.startswith(";"):
                continue
            if l.endswith(":"):
                self.label(l[:-1]); continue
            self.ins(l)

    def ins(self, l):
        I = parse(l)
        if I.kind == "wait":
            m = re.search(r"vmcnt\((\d+)\)", l); m2 = re.search(r"lgkmcnt\((\d+)\)", l)
            self.wait(vm=int(m.group(1)) if m else None, lg=int(m2.group(1)) if m2 else None)
            return
        self._autowait(I)
        n = self._need(I)
        while n > 0:
            k = min(n, 16)
            self._push(parse(f"s_nop {k-1}"))
            self.nnop += k
            n -= k
        self._push(I)
        if I.kind in ("dma", "vmld", "vmst"):
            self.vmseq += 1
            self.vm.append((self.vmseq, set(I.wr)))
            assert len(self.vm) <= 63, "vmcnt overflow"
        if I.kind in ("dsr", "dsw", "smem"):
            self.lgseq += 1
            self.lg.append((self.lgseq, set(I.wr)))
            if I.kind == "smem":
                self.smem_pending = True
        return I

    def vtok(self):
        return self.vmseq

    def ltok(self):
        return self.lgseq

    def wait_vtok(self, tok, lg=None):
        n = sum(1 for (s, d) in self.vm if s > tok)
        self.wait(vm=n, lg=lg)

    def wait_ltok(self, tok):
        n = sum(1 for (s, d) in self.lg if s > tok)
        self.wait(lg=n)

    def barrier(self):
        self.ins("s_barrier")

    def drain_state(self):
        self.wait(vm=0, lg=0)
        self.ins("s_nop 15")

    def text(self):
        return "\n".join(self.out) + "\n"


def interleave(em, main, fill, lead=0):
    def do(x):
        if callable(x):
            x()
        else:
            em(x)
    fill = list(fill)
    for _ in range(min(lead, len(fill))):
        do(fill.pop(0))
    n = len(main)
    nf = len(fill)
    done = 0
    for i, m in enumerate(main):
        do(m)
        tgt = (nf * (i + 1) + n - 1) // n
        while done < tgt:
            do(fill[done]); done += 1
    while done < nf:
        do(fill[done]); done += 1
```

```python
import sys, struct
from asmlib import *
from em import *

def f32hex(x):
    return "0x%08x" % struct.unpack("<I", struct.pack("<f", x))[0]

C_SCALE = (128 ** -0.5) * 1.4426950408889634
PART_OFF = 8 << 20
STAMP_OFF = 32 << 20
KB = [7, 8, 9, 4, 2, 5, 3, 6]
MF = "v_mfma_f32_32x32x16_bf16"

def vr(b, n): return f"v[{b}:{b+n-1}]"
def ar(b, n): return f"a[{b}:{b+n-1}]"

class StampsE:
    def __init__(self, em, vreg, stmp, on):
        self.em = em; self.v = vreg; self.s = stmp; self.n = 0; self.on = on
    def init(self):
        if self.on: self.em(f"v_mov_b32 v{self.v}, 0")
    def mark(self):
        if not self.on: return
        em = self.em; s = self.s
        em(f"""s_memrealtime s[{s}:{s+1}]
        s_memtime s[{s+2}:{s+3}]
        v_writelane_b32 v{self.v}, s{s}, {2*self.n}
        v_writelane_b32 v{self.v}, s{s+2}, {2*self.n+1}""")
        self.n += 1
    def store(self, vtmp, srd_ws, stmp, base):
        if not self.on: return
        em = self.em
        em(f"""s_lshl_b32 s{stmp}, s2, 2
        s_add_u32 s{stmp}, s{stmp}, s40
        s_lshl_b32 s{stmp}, s{stmp}, 8
        s_add_u32 s{stmp}, s{stmp}, {base}
        v_lshlrev_b32 v{vtmp}, 2, v2
        buffer_store_dword v{self.v}, v{vtmp}, s[{srd_ws}:{srd_ws+3}], s{stmp} offen""")

def prologue(em, nwg, endlabel):
    em(f"""s_cmp_ge_u32 s2, {nwg}
    s_cbranch_scc1 {endlabel}
    s_load_dwordx4 s[4:7], s[0:1], 0
    s_load_dwordx4 s[8:11], s[0:1], 16
    s_load_dwordx4 s[12:15], s[0:1], 32
    s_load_dwordx4 s[16:19], s[0:1], 48
    v_lshrrev_b32 v1, 6, v0
    v_and_b32 v2, 63, v0
    v_readfirstlane_b32 s40, v1""")

def mapping(em):
    em("""s_and_b32 s51, s2, 7
    s_lshr_b32 s52, s2, 3
    s_and_b32 s50, s51, 3
    s_lshr_b32 s51, s51, 2
    s_lshr_b32 s53, s52, 3
    s_and_b32 s42, s52, 7
    s_lshl_b32 s41, s51, 2
    s_add_u32 s41, s41, s53
    s_lshl_b32 s43, s53, 1
    s_add_u32 s43, s43, s42
    s_lshl_b32 s43, s43, 1
    s_and_b32 s43, s43, 15
    s_lshl_b32 s47, s40, 12
    s_mul_i32 s48, s40, 3072
    s_add_u32 s48, s48, 65536""")

def lane_common(em):
    em("""v_lshrrev_b32 v44, 4, v2
    v_and_b32 v45, 15, v2
    v_lshlrev_b32 v46, 2, v44
    v_xor_b32 v45, v45, v46
    v_lshlrev_b32 v45, 4, v45
    v_bfe_u32 v47, v2, 2, 2
    v_lshrrev_b32 v48, 5, v2
    v_xor_b32 v46, v1, v47
    v_lshlrev_b32 v46, 6, v46
    v_and_b32 v49, 1, v44
    v_lshl_add_u32 v46, v49, 5, v46
    v_and_b32 v49, 1, v2
    v_lshl_add_u32 v46, v49, 4, v46
    v_bfe_u32 v49, v2, 1, 1
    v_lshl_add_u32 v46, v49, 3, v46
    v_lshlrev_b32 v21, 4, v2""")

ACC = 64; ABUF = 112; BBUF = 144
VW = 240; VX = 244; VTR = 247; VXR = 248

def gemm_setup(em, RS, s_col, bmode):
    sh = {8192: 13, 2048: 11}[RS]
    em(f"""v_lshl_add_u32 v49, v1, 4, v44
    v_lshlrev_b32 v49, {sh}, v49
    v_add3_u32 v{VW}, v49, v45, s{s_col}""")
    for i in range(1, 4):
        em(f"v_add_u32 v{VW+i}, {i*(4*RS-1024)}, v{VW}")
    em(f"""v_lshl_add_u32 v49, v48, 3, v47
    v_lshl_add_u32 v{VTR}, v49, 8, v46""")
    if bmode == "x":
        em("""v_mul_u32_u24 v49, 24, v1
        v_lshrrev_b32 v50, 3, v2
        v_add_u32 v49, v49, v50
        v_and_b32 v51, 7, v2""")
        for jj in range(3):
            em(f"""v_add_u32 v50, {8*jj}, v49
            v_bfe_u32 v52, v50, 1, 3
            v_xor_b32 v52, v52, v51
            v_lshlrev_b32 v52, 4, v52
            v_lshl_add_u32 v52, v50, 11, v52
            v_subrev_u32 v{VX+jj}, {jj*1024}, v52""")
        em(f"""v_and_b32 v49, 31, v2
        v_bfe_u32 v50, v2, 1, 3
        v_xor_b32 v50, v50, v48
        v_lshlrev_b32 v50, 4, v50
        v_lshl_add_u32 v50, v49, 7, v50
        v_add_u32 v{VXR}, 0x10000, v50""")
        for ks in range(1, 4):
            em(f"v_xor_b32 v{VXR+ks}, {ks*32}, v{VXR}")
    else:
        em(f"""v_mul_u32_u24 v49, 0xc00, v1
        v_add_u32 v{VX}, v49, v21
        v_add_u32 v{VXR}, 0x10000, v21""")

def gemm_phase(em, st, srdW, srdB, wstep_sh, bstep, s_wbase, s_bbase, bmode, extra=None, wflags="", bflags=""):
    extra = extra or {}
    toks = {}
    def dma_items(s):
        slot = s % 4
        it = []
        def head():
            em(f"s_lshl_b32 s45, s43, {wstep_sh}")
            if s_wbase is not None:
                em(f"s_add_u32 s45, s45, s{s_wbase}")
            em(f"s_mul_i32 s46, s43, {bstep}")
            em(f"s_add_u32 s46, s46, s{s_bbase}")
            em(f"s_add_u32 s43, s43, 1")
            em(f"s_and_b32 s43, s43, 15")
            em(f"s_add_u32 m0, s47, {slot*16384}")
            em(f"buffer_load_dwordx4 v{VW}, s[{srdW}:{srdW+3}], s45 offen {wflags} lds")
        it.append(head)
        for i in range(1, 4):
            it.append(f"buffer_load_dwordx4 v{VW+i}, s[{srdW}:{srdW+3}], s45 offen offset:{i*1024} {wflags} lds")
        for jj in range(3):
            vx = VX + jj if bmode == "x" else VX
            l = f"buffer_load_dwordx4 v{vx}, s[{srdB}:{srdB+3}], s46 offen offset:{jj*1024} {bflags} lds"
            if jj == 0:
                l = f"s_add_u32 m0, s48, {slot*12288}\n" + l
            it.append(l)
        def tok(): toks[s] = em.vtok()
        it.append(tok)
        return it
    def read_items(s):
        slot = s % 4; par = s & 1
        it = []
        for ks in range(4):
            for e in range(2):
                it.append(f"ds_read_b64_tr_b16 {vr(ABUF+par*16+ks*4+e*2, 2)}, v{VTR} offset:{slot*16384+ks*4096+e*1024}")
            for qt in range(3):
                d = vr(BBUF + par*48 + (ks*3+qt)*4, 4)
                if bmode == "x":
                    it.append(f"ds_read_b128 {d}, v{VXR+ks} offset:{slot*12288+qt*4096}")
                else:
                    it.append(f"ds_read_b128 {d}, v{VXR} offset:{slot*12288+(ks*3+qt)*1024}")
        return it
    def run(items):
        for x in items:
            x() if callable(x) else em(x)
    for s in range(4):
        run(dma_items(s))
    return_hook = yield_point = None
    def body():
        em.wait_vtok(toks[0]); em.barrier()
        st.mark()
        run(read_items(0))
        for s in range(16):
            par = s & 1
            if s < 15:
                em.wait_vtok(toks[s+1], lg=0)
            else:
                em.wait(lg=0)
            em.barrier()
            main = []
            for ks in range(4):
                for qt in range(3):
                    acc = vr(ACC + qt*16, 16)
                    c = "0" if (s == 0 and ks == 0) else acc
                    main.append(f"{MF} {acc}, {vr(ABUF+par*16+ks*4, 4)}, {vr(BBUF+par*48+(ks*3+qt)*4, 4)}, {c}")
            dm = dma_items(s+4) if s + 4 < 16 else []
            dm = dm + list(extra.get(s, []))
            rd = read_items(s+1) if s < 15 else []
            fill = []
            nd, nr = len(dm), len(rd)
            di = 0
            tot = max(nr, 1)
            for i in range(tot):
                while di < nd and di * tot <= i * nd:
                    fill.append(dm[di]); di += 1
                if i < nr: fill.append(rd[i])
            fill += dm[di:]
            interleave(em, main, fill, lead=1)
    return body

def k1(stamps=False, stop=None):
    em = Em()
    st = StampsE(em, 63, 60, stamps)
    prologue(em, 256, "L_end_k1")
    mapping(em)
    lane_common(em)
    em("""s_lshl_b32 s54, s50, 3
    s_add_u32 s54, s54, s42
    s_lshl_b32 s55, s54, 8
    s_mul_i32 s56, s41, 196608
    s_lshl_b32 s57, s41, 5
    s_add_u32 s57, s57, s54""")
    gemm_setup(em, 8192, 55, "x")
    em.wait(lg=0)
    srd(em, 20, 4, SZ_X); srd(em, 24, 10, SZ_W)
    st.init()
    st.mark()
    ktok = {}; vtok = {}
    def kv_items(c, isv):
        srdn = 32 if isv else 28
        it = []
        for i in range(4):
            vo = 3 if isv else 4 + i
            l = f"buffer_load_dwordx4 v{vo}, s[{srdn}:{srdn+3}], s49 offen offset:{i*1024} nt lds"
            if i == 0:
                l = f"s_mov_b32 s49, {c*16384}\ns_add_u32 m0, s47, {KB[c]*16384}\n" + l
            it.append(l)
        def tok(): (vtok if isv else ktok)[c] = em.vtok()
        it.append(tok)
        return it
    ksched = {11: [0, 1], 12: [2], 13: [3], 14: [4, 5], 15: [6, 7]}
    extra = {s: sum((kv_items(c, False) for c in cs), []) for s, cs in ksched.items()}
    body = gemm_phase(em, st, 24, 20, 19, 128, None, 56, "x", extra=extra)
    srd(em, 28, 6, SZ_KV); srd(em, 32, 8, SZ_KV); srd(em, 36, 18, SZ_WS)
    em(f"""s_lshl_b32 s58, s57, 17
    v_lshl_add_u32 v49, v1, 4, v44
    v_lshlrev_b32 v49, 8, v49
    v_add_u32 v49, s58, v49
    v_add_u32 v3, v49, v45
    v_and_b32 v50, 15, v2""")
    for i in range(4):
        em(f"""v_add_u32 v51, {4*i}, v44
        v_xor_b32 v51, v51, v50
        v_lshl_add_u32 v{4+i}, v51, 4, v49""")
    em("""v_lshl_add_u32 v49, v48, 2, v47
    v_lshl_add_u32 v8, v49, 8, v46
    v_add_u32 v42, 0x10000, v8
    v_add_u32 v43, 0x20000, v8""")
    em("""v_xor_b32 v49, v48, v50
    v_lshlrev_b32 v49, 4, v49
    v_lshl_add_u32 v49, v50, 8, v49
    v_lshl_add_u32 v49, v1, 12, v49
    v_bfe_u32 v51, v2, 4, 1""")
    for kt in range(4):
        d = (KB[2*kt+1] - KB[2*kt]) * 16384
        em(f"""v_mul_i32_i24 v52, {d if -16 <= d <= 64 else hex(d & 0xffffffff)}, v51
        v_add3_u32 v{9+kt}, v49, v52, s0""".replace("v_add3_u32 v%d, v49, v52, s0" % (9+kt), f"v_add_u32 v52, v49, v52\nv_add_u32 v{9+kt}, {KB[2*kt]*16384}, v52"))
    em(f"""v_lshl_add_u32 v22, v1, 13, v21
    v_and_b32 v49, 31, v2
    v_lshlrev_b32 v49, 4, v49
    v_add_u32 v24, 0x6000, v49
    v_lshl_add_u32 v23, v1, 2, v24
    v_lshl_add_u32 v28, v1, 11, v21
    s_mov_b32 s64, {f32hex(C_SCALE)}
    s_mov_b32 s65, {f32hex(C_SCALE)}
    s_mov_b32 s66, {f32hex(-C_SCALE)}""")
    body()
    st.mark()
    for qt in range(3):
        b = ACC + 16*qt
        for j in range(8):
            em(f"v_cvt_pk_bf16_f32 v{b+j}, v{b+2*j}, v{b+2*j+1}")
        for e in range(2):
            em(f"ds_write_b128 v28, {vr(b+4*e, 4)} offset:{qt*8192+e*1024}")
    def kdrain_items(kt):
        it = []
        def w(): em.wait_vtok(ktok[2*kt+1])
        it.append(w)
        for ks in range(8):
            if ks == 0:
                it.append(f"ds_read_b128 {ar(32*kt, 4)}, v{9+kt}")
            else:
                it.append(f"v_xor_b32 v{12+ks}, {ks*32}, v{9+kt}\nds_read_b128 {ar(32*kt+4*ks, 4)}, v{12+ks}")
        return it
    def run(items):
        for x in items:
            x() if callable(x) else em(x)
    em.wait(lg=0); em.barrier()
    order = [(qt, ks) for ks in range(8) for qt in range(3)]
    for qt, ks in order:
        em(f"ds_read_b128 {ar(128+(qt*8+ks)*4, 4)}, v21 offset:{(qt*8+ks)*1024}")
    run(kdrain_items(0))
    st.mark()
    def S(qt, kt): return 64 + (qt*4 + kt)*16
    def max_items(kt):
        it = []
        for qt in range(3):
            b = S(qt, kt); m = 25 + qt
            for j in range(8):
                if kt == 0 and j == 0:
                    it.append(f"v_max_f32 v{m}, v{b}, v{b+1}")
                else:
                    it.append(f"v_max3_f32 v{m}, v{b+2*j}, v{b+2*j+1}, v{m}")
        return it
    for kt in range(4):
        main = []
        for ks in range(8):
            for qt in range(3):
                d = vr(S(qt, kt), 16)
                main.append(f"{MF} {d}, {ar(32*kt+4*ks, 4)}, {ar(128+(qt*8+ks)*4, 4)}, {'0' if ks == 0 else d}")
        em.wait(lg=0)
        fill = kv_items(2*kt, True) + kv_items(2*kt+1, True)
        mx = max_items(kt-1) if kt > 0 else []
        interleave(em, main[:4], fill[:5])
        interleave(em, main[4:19], fill[5:] + mx)
        interleave(em, main[19:], kdrain_items(kt+1) if kt < 3 else [], lead=3)
    st.mark()
    run(max_items(3))
    for qt in range(3):
        m = 25 + qt
        em(f"""v_mov_b32 v{13+qt}, v{m}
        v_permlane32_swap_b32 v{13+qt}, v{m}
        v_max_f32 v{m}, v{13+qt}, v{m}
        ds_write_b32 v23, v{m} offset:{qt*512}""")
    em.wait(lg=0); em.barrier()
    for qt in range(3):
        em(f"ds_read_b128 {vr(44+4*qt, 4)}, v24 offset:{qt*512}")
    for qt in range(3):
        t = 44 + 4*qt
        em(f"""v_max3_f32 v{t}, v{t}, v{t+1}, v{t+2}
        v_max_f32 v{t}, v{t}, v{t+3}
        v_mul_f32 v{30+2*qt}, s66, v{t}
        v_mul_f32 v{31+2*qt}, s66, v{t}""")
    em.wait(lg=0); em.barrier()
    st.mark()
    def exp_items(qt):
        it = []
        sm = vr(36+2*qt, 2)
        for kt in range(4):
            b = S(qt, kt)
            for j in range(8):
                it.append(f"v_pk_fma_f32 {vr(b+2*j, 2)}, {vr(b+2*j, 2)}, s[64:65], {vr(30+2*qt, 2)}")
            for j in range(16):
                it.append(f"v_exp_f32 v{b+j}, v{b+j}")
            for j in range(8):
                if kt == 0 and j == 0:
                    it.append(f"v_pk_add_f32 {sm}, {vr(b, 2)}, {vr(b+2, 2)}")
                elif not (kt == 0 and j == 1):
                    it.append(f"v_pk_add_f32 {sm}, {sm}, {vr(b+2*j, 2)}")
                it.append(f"v_cvt_pk_bf16_f32 v{b+j}, v{b+2*j}, v{b+2*j+1}")
        return it
    def pwrite(qt):
        for kt in range(4):
            b = S(qt, kt)
            for e in range(2):
                em(f"ds_write_b128 v22, {vr(b+4*e, 4)} offset:{(2*kt+e)*1024}")
    def gather_items(qt):
        return [f"ds_read_b128 {ar(128*qt+(c*4+wp)*4, 4)}, v21 offset:{wp*8192+c*1024}" for c in range(8) for wp in range(4)]
    run(exp_items(0)); pwrite(0)
    em.wait(lg=0); em.barrier()
    interleave(em, exp_items(1), gather_items(0), lead=2)
    em.wait(lg=0); em.barrier()
    pwrite(1)
    em.wait(lg=0); em.barrier()
    interleave(em, exp_items(2), gather_items(1), lead=2)
    em.wait(lg=0); em.barrier()
    pwrite(2)
    for qt in range(3):
        s = 36 + 2*qt
        em(f"""v_add_f32 v{s}, v{s}, v{s+1}
        v_mov_b32 v{s+1}, v{s}
        v_permlane32_swap_b32 v{s+1}, v{s}
        v_add_f32 v{s}, v{s}, v{s+1}""")
    sb = KB[0]*16384 - 0x6000
    em(f"""v_add_u32 v23, {sb}, v23
    v_add_u32 v24, {sb}, v24""")
    em.wait_vtok(vtok[0], lg=0); em.barrier()
    st.mark()
    VB = 128; PB = 160
    def pv_reads(c):
        par = c & 1; blk = KB[c]
        va = [8, 42, 43][blk >> 2]; boff = (blk & 3) * 16384
        it = []
        for wp in range(4):
            for e in range(2):
                it.append(f"ds_read_b64_tr_b16 {vr(VB+par*16+wp*4+2*e, 2)}, v{va} offset:{boff+wp*4096+e*2048}")
            it.append(f"ds_read_b128 {vr(PB+par*16+wp*4, 4)}, v21 offset:{wp*8192+c*1024}")
        return it
    run(pv_reads(0))
    for c in range(8):
        par = c & 1
        main = []
        for wp in range(4):
            for qt in range(3):
                d = vr(64+16*qt, 16)
                B = ar(128*qt+(c*4+wp)*4, 4) if qt < 2 else vr(PB+par*16+wp*4, 4)
                main.append(f"{MF} {d}, {vr(VB+par*16+wp*4, 4)}, {B}, {'0' if (c == 0 and wp == 0) else d}")
        run(main[:7])
        fill = []
        if c < 7:
            em.wait_vtok(vtok[c+1], lg=0); em.barrier()
            fill = pv_reads(c+1)
        if c == 0:
            fill += [f"ds_write_b32 v23, v{36+2*qt} offset:{qt*512}" for qt in range(3)]
        if c == 2:
            fill += [f"ds_read_b128 {vr(44+4*qt, 4)}, v24 offset:{qt*512}" for qt in range(3)]
        if c == 4:
            for qt in range(3):
                t = 44 + 4*qt
                fill += [f"v_add_f32 v{t}, v{t}, v{t+1}", f"v_add_f32 v{t+2}, v{t+2}, v{t+3}", f"v_add_f32 v{t}, v{t}, v{t+2}",
                         f"v_rcp_f32 v{30+2*qt}, v{t}", f"v_mov_b32 v{31+2*qt}, v{30+2*qt}"]
        interleave(em, main[7:], fill, lead=3)
    st.mark()
    em("""s_mul_i32 s58, s57, 24576
    s_add_u32 s59, s58, 3072
    v_mul_u32_u24 v49, 0x1800, v1
    v_add_u32 v49, v49, v21""")
    for qt in range(3):
        b = 64 + 16*qt
        for j in range(8):
            em(f"v_pk_mul_f32 {vr(b+2*j, 2)}, {vr(b+2*j, 2)}, {vr(30+2*qt, 2)}")
        for j in range(8):
            em(f"v_cvt_pk_bf16_f32 v{b+j}, v{b+2*j}, v{b+2*j+1}")
        for e in range(2):
            em(f"buffer_store_dwordx4 {vr(b+4*e, 4)}, v49, s[36:39], s{58+e} offen offset:{qt*1024}")
    st.mark()
    st.store(50, 36, 67, STAMP_OFF)
    em.label("L_end_k1")
    em("s_endpgm")
    return em

def k2(stamps=False):
    em = Em()
    st = StampsE(em, 63, 60, stamps)
    prologue(em, 256, "L_end_k2")
    mapping(em)
    lane_common(em)
    em("""s_lshl_b32 s55, s42, 8
    s_lshl_b32 s54, s50, 21
    s_lshl_b32 s56, s41, 2
    s_add_u32 s56, s56, s50
    s_mul_i32 s56, s56, 196608""")
    gemm_setup(em, 2048, 55, "frag")
    em.wait(lg=0)
    srd(em, 24, 12, SZ_W); srd(em, 36, 18, SZ_WS)
    st.init(); st.mark()
    body = gemm_phase(em, st, 24, 36, 17, 12288, 54, 56, "frag")
    em(f"""s_lshl_b32 s58, s50, 3
    s_add_u32 s58, s58, s41
    s_lshl_b32 s58, s58, 3
    s_add_u32 s58, s58, s42
    s_lshl_b32 s58, s58, 2
    s_add_u32 s58, s58, s40
    s_mul_i32 s58, s58, 12288
    s_add_u32 s58, s58, {PART_OFF}
    s_add_u32 s59, s58, 4096
    s_add_u32 s57, s58, 8192""")
    body()
    st.mark()
    for qt in range(3):
        for j in range(4):
            em(f"buffer_store_dwordx4 {vr(ACC+16*qt+4*j, 4)}, v21, s[36:39], s{[58,59,57][qt]} offen offset:{j*1024}")
    st.mark()
    st.store(50, 36, 67, STAMP_OFF + (1 << 20))
    em.label("L_end_k2")
    em("s_endpgm")
    return em

def k3():
    em = Em()
    prologue(em, 768, "L_end_k3")
    em(f"""s_mul_hi_u32 s41, s2, 0x55555556
    s_mul_i32 s42, s41, 3
    s_sub_u32 s42, s2, s42
    s_lshr_b32 s43, s41, 5
    s_and_b32 s44, s41, 31
    s_lshl_b32 s45, s2, 12
    s_lshl_b32 s46, s40, 11
    s_add_u32 s45, s45, s46
    s_add_u32 s45, s45, {PART_OFF}
    s_add_u32 s46, s45, {768*4096}
    s_add_u32 s47, s45, {2*768*4096}
    s_add_u32 s48, s45, {3*768*4096}
    v_lshlrev_b32 v3, 4, v2""")
    em.wait(lg=0)
    srd(em, 36, 18, SZ_WS); srd(em, 20, 14, SZ_OUT)
    for kq in range(4):
        for j in range(2):
            em(f"buffer_load_dwordx4 {vr(8+kq*8+j*4, 4)}, v3, s[36:39], s{45+kq} offen offset:{j*1024}")
    em("""s_mul_i32 s49, s43, 96
    s_lshl_b32 s50, s42, 5
    s_add_u32 s49, s49, s50
    s_lshl_b32 s49, s49, 11
    s_lshl_b32 s50, s44, 6
    s_add_u32 s49, s49, s50
    s_lshl_b32 s50, s40, 5
    s_add_u32 s49, s49, s50
    v_and_b32 v4, 31, v2
    v_lshlrev_b32 v4, 11, v4
    v_lshrrev_b32 v5, 5, v2
    v_lshl_add_u32 v4, v5, 4, v4""")
    for j in range(4):
        em(f"v_pk_add_f32 {vr(8+2*j, 2)}, {vr(8+2*j, 2)}, {vr(16+2*j, 2)}")
    for j in range(4):
        em(f"v_pk_add_f32 {vr(24+2*j, 2)}, {vr(24+2*j, 2)}, {vr(32+2*j, 2)}")
    for j in range(4):
        em(f"v_pk_add_f32 {vr(8+2*j, 2)}, {vr(8+2*j, 2)}, {vr(24+2*j, 2)}")
    for j in range(4):
        em(f"v_cvt_pk_bf16_f32 v{40+j}, v{8+2*j}, v{9+2*j}")
    em("buffer_store_dwordx4 v[40:43], v4, s[20:23], s49 offen")
    em.label("L_end_k3")
    em("s_endpgm")
    return em

def build(path, stamps=False, which=("k1", "k2", "k3")):
    ks = []; ls = []
    if "k1" in which:
        e = k1(stamps); print("k1 instrs", e.ninstr, "nops", e.nnop)
        ks.append(kernel_text("mha_attn_kernel", e.text(), 512, 256)); ls.append(("mha_attn_kernel", 256, 256, 163840))
    if "k2" in which:
        e = k2(stamps); print("k2 instrs", e.ninstr, "nops", e.nnop)
        ks.append(kernel_text("mha_proj_kernel", e.text(), 256, 256)); ls.append(("mha_proj_kernel", 256, 256, 114688))
    if "k3" in which:
        e = k3(); print("k3 instrs", e.ninstr, "nops", e.nnop)
        ks.append(kernel_text("mha_red_kernel", e.text(), 48, 48)); ls.append(("mha_red_kernel", 768, 128, 0))
    open(path, "w").write(file_text(ls, ks))

if __name__ == "__main__":
    build("v1.s", stamps=False)
    build("v1_st.s", stamps=True)
```

```python
import sys, struct
from asmlib import *
from em import *

def f32hex(x):
    return "0x%08x" % struct.unpack("<I", struct.pack("<f", x))[0]

C_SCALE = (128 ** -0.5) * 1.4426950408889634
PART_OFF = 8 << 20
STAMP_OFF = 32 << 20
KB = [7, 8, 9, 4, 2, 5, 3, 6]
MF = "v_mfma_f32_32x32x16_bf16"

def vr(b, n): return f"v[{b}:{b+n-1}]"
def ar(b, n): return f"a[{b}:{b+n-1}]"

class StampsE:
    def __init__(self, em, vreg, stmp, on):
        self.em = em; self.v = vreg; self.s = stmp; self.n = 0; self.on = on
    def init(self):
        if self.on: self.em(f"v_mov_b32 v{self.v}, 0")
    def mark(self):
        if not self.on: return
        em = self.em; s = self.s
        em(f"""s_memrealtime s[{s}:{s+1}]
        s_memtime s[{s+2}:{s+3}]
        v_writelane_b32 v{self.v}, s{s}, {2*self.n}
        v_writelane_b32 v{self.v}, s{s+2}, {2*self.n+1}""")
        self.n += 1
    def store(self, vtmp, srd_ws, stmp, base):
        if not self.on: return
        em = self.em
        em(f"""s_lshl_b32 s{stmp}, s2, 2
        s_add_u32 s{stmp}, s{stmp}, s40
        s_lshl_b32 s{stmp}, s{stmp}, 8
        s_add_u32 s{stmp}, s{stmp}, {base}
        v_lshlrev_b32 v{vtmp}, 2, v2
        buffer_store_dword v{self.v}, v{vtmp}, s[{srd_ws}:{srd_ws+3}], s{stmp} offen""")

def prologue(em, nwg, endlabel):
    em(f"""s_cmp_ge_u32 s2, {nwg}
    s_cbranch_scc1 {endlabel}
    s_load_dwordx4 s[4:7], s[0:1], 0
    s_load_dwordx4 s[8:11], s[0:1], 16
    s_load_dwordx4 s[12:15], s[0:1], 32
    s_load_dwordx4 s[16:19], s[0:1], 48
    v_lshrrev_b32 v1, 6, v0
    v_and_b32 v2, 63, v0
    v_readfirstlane_b32 s40, v1""")

ROT = (4, 2)
def mapping(em):
    em(f"""s_and_b32 s51, s2, 7
    s_lshr_b32 s52, s2, 3
    s_and_b32 s50, s51, 3
    s_lshr_b32 s51, s51, 2
    s_lshr_b32 s53, s52, 3
    s_and_b32 s42, s52, 7
    s_lshl_b32 s41, s51, 2
    s_add_u32 s41, s41, s53
    s_mul_i32 s43, s53, {ROT[0]}
    s_mul_i32 s44, s42, {ROT[1]}
    s_add_u32 s43, s43, s44
    s_lshr_b32 s43, s43, {ROT[2] if len(ROT) > 2 else 0}
    s_and_b32 s43, s43, 15
    s_lshl_b32 s47, s40, 12
    s_mul_i32 s48, s40, 3072
    s_add_u32 s48, s48, 65536""")

def lane_common(em):
    em("""v_lshrrev_b32 v44, 4, v2
    v_and_b32 v45, 15, v2
    v_lshlrev_b32 v46, 2, v44
    v_xor_b32 v45, v45, v46
    v_lshlrev_b32 v45, 4, v45
    v_bfe_u32 v47, v2, 2, 2
    v_lshrrev_b32 v48, 5, v2
    v_xor_b32 v46, v1, v47
    v_lshlrev_b32 v46, 6, v46
    v_and_b32 v49, 1, v44
    v_lshl_add_u32 v46, v49, 5, v46
    v_and_b32 v49, 1, v2
    v_lshl_add_u32 v46, v49, 4, v46
    v_bfe_u32 v49, v2, 1, 1
    v_lshl_add_u32 v46, v49, 3, v46
    v_lshlrev_b32 v21, 4, v2""")

ACC = 64; ABUF = 112; BBUF = 144
VW = 240; VX = 244; VTR = 247; VXR = 248

def gemm_setup(em, RS, s_col, bmode):
    sh = {8192: 13, 2048: 11}[RS]
    em(f"""v_lshl_add_u32 v49, v1, 4, v44
    v_lshlrev_b32 v49, {sh}, v49
    v_add3_u32 v{VW}, v49, v45, s{s_col}""")
    for i in range(1, 4):
        em(f"v_add_u32 v{VW+i}, {i*(4*RS-1024)}, v{VW}")
    em(f"""v_lshl_add_u32 v49, v48, 3, v47
    v_lshl_add_u32 v{VTR}, v49, 8, v46""")
    if bmode == "x":
        em("""v_mul_u32_u24 v49, 24, v1
        v_lshrrev_b32 v50, 3, v2
        v_add_u32 v49, v49, v50
        v_and_b32 v51, 7, v2""")
        for jj in range(3):
            em(f"""v_add_u32 v50, {8*jj}, v49
            v_bfe_u32 v52, v50, 1, 3
            v_xor_b32 v52, v52, v51
            v_lshlrev_b32 v52, 4, v52
            v_lshl_add_u32 v52, v50, 11, v52
            v_subrev_u32 v{VX+jj}, {jj*1024}, v52""")
        em(f"""v_and_b32 v49, 31, v2
        v_bfe_u32 v50, v2, 1, 3
        v_xor_b32 v50, v50, v48
        v_lshlrev_b32 v50, 4, v50
        v_lshl_add_u32 v50, v49, 7, v50
        v_add_u32 v{VXR}, 0x10000, v50""")
        for ks in range(1, 4):
            em(f"v_xor_b32 v{VXR+ks}, {ks*32}, v{VXR}")
    else:
        em(f"""v_mul_u32_u24 v49, 0xc00, v1
        v_add_u32 v{VX}, v49, v21
        v_add_u32 v{VXR}, 0x10000, v21""")

def gemm_phase(em, st, srdW, srdB, wstep_sh, bstep, s_wbase, s_bbase, bmode, extra=None, wflags="", bflags="", pre=None):
    extra = extra or {}
    toks = {}
    def dma_items(s):
        slot = s % 4
        it = []
        def head():
            em(f"s_lshl_b32 s45, s43, {wstep_sh}")
            if s_wbase is not None:
                em(f"s_add_u32 s45, s45, s{s_wbase}")
            em(f"s_mul_i32 s46, s43, {bstep}")
            em(f"s_add_u32 s46, s46, s{s_bbase}")
            em(f"s_add_u32 s43, s43, 1")
            em(f"s_and_b32 s43, s43, 15")
            em(f"s_add_u32 m0, s47, {slot*16384}")
            em(f"buffer_load_dwordx4 v{VW}, s[{srdW}:{srdW+3}], s45 offen {wflags} lds")
        it.append(head)
        for i in range(1, 4):
            it.append(f"buffer_load_dwordx4 v{VW+i}, s[{srdW}:{srdW+3}], s45 offen offset:{i*1024} {wflags} lds")
        for jj in range(3):
            vx = VX + jj if bmode == "x" else VX
            l = f"buffer_load_dwordx4 v{vx}, s[{srdB}:{srdB+3}], s46 offen offset:{jj*1024} {bflags} lds"
            if jj == 0:
                l = f"s_add_u32 m0, s48, {slot*12288}\n" + l
            it.append(l)
        def tok(): toks[s] = em.vtok()
        it.append(tok)
        return it
    def read_items(s):
        slot = s % 4; par = s & 1
        it = []
        for ks in range(4):
            for e in range(2):
                it.append(f"ds_read_b64_tr_b16 {vr(ABUF+par*16+ks*4+e*2, 2)}, v{VTR} offset:{slot*16384+ks*4096+e*1024}")
            for qt in range(3):
                d = vr(BBUF + par*48 + (ks*3+qt)*4, 4)
                if bmode == "x":
                    it.append(f"ds_read_b128 {d}, v{VXR+ks} offset:{slot*12288+qt*4096}")
                else:
                    it.append(f"ds_read_b128 {d}, v{VXR} offset:{slot*12288+(ks*3+qt)*1024}")
        return it
    def run(items):
        for x in items:
            x() if callable(x) else em(x)
    for s in range(4):
        run((pre or {}).get(s, []))
        run(dma_items(s))
    return_hook = yield_point = None
    def body():
        em.wait_vtok(toks[0]); em.barrier()
        st.mark()
        run(read_items(0))
        for s in range(16):
            par = s & 1
            if s < 15:
                em.wait_vtok(toks[s+1], lg=0)
            else:
                em.wait(lg=0)
            em.barrier()
            if s in (2, 4, 6, 8, 10, 12, 14): st.mark()
            main = []
            for ks in range(4):
                for qt in range(3):
                    acc = vr(ACC + qt*16, 16)
                    c = "0" if (s == 0 and ks == 0) else acc
                    main.append(f"{MF} {acc}, {vr(ABUF+par*16+ks*4, 4)}, {vr(BBUF+par*48+(ks*3+qt)*4, 4)}, {c}")
            dm = dma_items(s+4) if s + 4 < 16 else []
            dm = dm + list(extra.get(s, []))
            rd = read_items(s+1) if s < 15 else []
            fill = []
            nd, nr = len(dm), len(rd)
            di = 0
            tot = max(nr, 1)
            for i in range(tot):
                while di < nd and di * tot <= i * nd:
                    fill.append(dm[di]); di += 1
                if i < nr: fill.append(rd[i])
            fill += dm[di:]
            interleave(em, main, fill, lead=1)
    return body

def k1(stamps=False, stop=None):
    em = Em()
    st = StampsE(em, 63, 60, stamps)
    prologue(em, 256, "L_end_k1")
    mapping(em)
    lane_common(em)
    em("""s_lshl_b32 s54, s50, 3
    s_add_u32 s54, s54, s42
    s_lshl_b32 s55, s54, 8
    s_mul_i32 s56, s41, 196608
    s_lshl_b32 s57, s41, 5
    s_add_u32 s57, s57, s54""")
    gemm_setup(em, 8192, 55, "x")
    em.wait(lg=0)
    srd(em, 20, 4, SZ_X); srd(em, 24, 10, SZ_W)
    st.init()
    st.mark()
    ktok = {}; vtok = {}
    def kv_items(c, isv):
        srdn = 32 if isv else 28
        it = []
        for i in range(4):
            vo = 3 if isv else 4 + i
            l = f"buffer_load_dwordx4 v{vo}, s[{srdn}:{srdn+3}], s49 offen offset:{i*1024} nt lds"
            if i == 0:
                l = f"s_mov_b32 s49, {c*16384}\ns_add_u32 m0, s47, {KB[c]*16384}\n" + l
            it.append(l)
        def tok(): (vtok if isv else ktok)[c] = em.vtok()
        it.append(tok)
        return it
    ksched = {11: [0, 1], 12: [2], 13: [3], 14: [4, 5], 15: [6, 7]}
    extra = {s: sum((kv_items(c, False) for c in cs), []) for s, cs in ksched.items()}
    body = gemm_phase(em, st, 24, 20, 19, 128, None, 56, "x", extra=extra)
    srd(em, 28, 6, SZ_KV); srd(em, 32, 8, SZ_KV); srd(em, 36, 18, SZ_WS)
    em(f"""s_lshl_b32 s58, s57, 17
    v_lshl_add_u32 v49, v1, 4, v44
    v_lshlrev_b32 v49, 8, v49
    v_add_u32 v49, s58, v49
    v_add_u32 v3, v49, v45
    v_and_b32 v50, 15, v2""")
    for i in range(4):
        em(f"""v_add_u32 v51, {4*i}, v44
        v_xor_b32 v51, v51, v50
        v_lshl_add_u32 v{4+i}, v51, 4, v49""")
    em("""v_lshl_add_u32 v49, v48, 2, v47
    v_lshl_add_u32 v8, v49, 8, v46
    v_add_u32 v42, 0x10000, v8
    v_add_u32 v43, 0x20000, v8""")
    em("""v_xor_b32 v49, v48, v50
    v_lshlrev_b32 v49, 4, v49
    v_lshl_add_u32 v49, v50, 8, v49
    v_lshl_add_u32 v49, v1, 12, v49
    v_bfe_u32 v51, v2, 4, 1""")
    for kt in range(4):
        d = (KB[2*kt+1] - KB[2*kt]) * 16384
        em(f"""v_mul_i32_i24 v52, {d if -16 <= d <= 64 else hex(d & 0xffffffff)}, v51
        v_add3_u32 v{9+kt}, v49, v52, s0""".replace("v_add3_u32 v%d, v49, v52, s0" % (9+kt), f"v_add_u32 v52, v49, v52\nv_add_u32 v{9+kt}, {KB[2*kt]*16384}, v52"))
    em(f"""v_lshl_add_u32 v22, v1, 13, v21
    v_and_b32 v49, 31, v2
    v_lshlrev_b32 v49, 4, v49
    v_add_u32 v24, 0x6000, v49
    v_lshl_add_u32 v23, v1, 2, v24
    v_lshl_add_u32 v28, v1, 11, v21
    s_mov_b32 s64, {f32hex(C_SCALE)}
    s_mov_b32 s65, {f32hex(C_SCALE)}
    s_mov_b32 s66, {f32hex(-C_SCALE)}""")
    body()
    st.mark()
    for qt in range(3):
        b = ACC + 16*qt
        for j in range(8):
            em(f"v_cvt_pk_bf16_f32 v{b+j}, v{b+2*j}, v{b+2*j+1}")
        for e in range(2):
            em(f"ds_write_b128 v28, {vr(b+4*e, 4)} offset:{qt*8192+e*1024}")
    def kdrain_items(kt):
        it = []
        def w(): em.wait_vtok(ktok[2*kt+1])
        it.append(w)
        for ks in range(8):
            if ks == 0:
                it.append(f"ds_read_b128 {ar(32*kt, 4)}, v{9+kt}")
            else:
                it.append(f"v_xor_b32 v{12+ks}, {ks*32}, v{9+kt}\nds_read_b128 {ar(32*kt+4*ks, 4)}, v{12+ks}")
        return it
    def run(items):
        for x in items:
            x() if callable(x) else em(x)
    em.wait(lg=0); em.barrier()
    order = [(qt, ks) for ks in range(8) for qt in range(3)]
    for qt, ks in order:
        em(f"ds_read_b128 {ar(128+(qt*8+ks)*4, 4)}, v21 offset:{(qt*8+ks)*1024}")
    run(kdrain_items(0))
    st.mark()
    def S(qt, kt): return 64 + (qt*4 + kt)*16
    def max_items(kt):
        it = []
        for qt in range(3):
            b = S(qt, kt); m = 25 + qt
            for j in range(8):
                if kt == 0 and j == 0:
                    it.append(f"v_max_f32 v{m}, v{b}, v{b+1}")
                else:
                    it.append(f"v_max3_f32 v{m}, v{b+2*j}, v{b+2*j+1}, v{m}")
        return it
    for kt in range(4):
        main = []
        for ks in range(8):
            for qt in range(3):
                d = vr(S(qt, kt), 16)
                main.append(f"{MF} {d}, {ar(32*kt+4*ks, 4)}, {ar(128+(qt*8+ks)*4, 4)}, {'0' if ks == 0 else d}")
        em.wait(lg=0)
        fill = kv_items(2*kt, True) + kv_items(2*kt+1, True)
        mx = max_items(kt-1) if kt > 0 else []
        interleave(em, main[:4], fill[:5])
        interleave(em, main[4:19], fill[5:] + mx)
        interleave(em, main[19:], kdrain_items(kt+1) if kt < 3 else [], lead=3)
    st.mark()
    run(max_items(3))
    for qt in range(3):
        m = 25 + qt
        em(f"""v_mov_b32 v{13+qt}, v{m}
        v_permlane32_swap_b32 v{13+qt}, v{m}
        v_max_f32 v{m}, v{13+qt}, v{m}
        ds_write_b32 v23, v{m} offset:{qt*512}""")
    em.wait(lg=0); em.barrier()
    for qt in range(3):
        em(f"ds_read_b128 {vr(44+4*qt, 4)}, v24 offset:{qt*512}")
    for qt in range(3):
        t = 44 + 4*qt
        em(f"""v_max3_f32 v{t}, v{t}, v{t+1}, v{t+2}
        v_max_f32 v{t}, v{t}, v{t+3}
        v_mul_f32 v{30+2*qt}, s66, v{t}
        v_mul_f32 v{31+2*qt}, s66, v{t}""")
    em.wait(lg=0); em.barrier()
    st.mark()
    def exp_items(qt):
        it = []
        sm = vr(36+2*qt, 2)
        for kt in range(4):
            b = S(qt, kt)
            for j in range(8):
                it.append(f"v_pk_fma_f32 {vr(b+2*j, 2)}, {vr(b+2*j, 2)}, s[64:65], {vr(30+2*qt, 2)}")
            for j in range(16):
                it.append(f"v_exp_f32 v{b+j}, v{b+j}")
            for j in range(8):
                if kt == 0 and j == 0:
                    it.append(f"v_pk_add_f32 {sm}, {vr(b, 2)}, {vr(b+2, 2)}")
                elif not (kt == 0 and j == 1):
                    it.append(f"v_pk_add_f32 {sm}, {sm}, {vr(b+2*j, 2)}")
                it.append(f"v_cvt_pk_bf16_f32 v{b+j}, v{b+2*j}, v{b+2*j+1}")
        return it
    def pwrite(qt):
        for kt in range(4):
            b = S(qt, kt)
            for e in range(2):
                em(f"ds_write_b128 v22, {vr(b+4*e, 4)} offset:{(2*kt+e)*1024}")
    def gather_items(qt):
        return [f"ds_read_b128 {ar(128*qt+(c*4+wp)*4, 4)}, v21 offset:{wp*8192+c*1024}" for c in range(8) for wp in range(4)]
    run(exp_items(0)); pwrite(0)
    em.wait(lg=0); em.barrier()
    interleave(em, exp_items(1), gather_items(0), lead=2)
    em.wait(lg=0); em.barrier()
    pwrite(1)
    em.wait(lg=0); em.barrier()
    interleave(em, exp_items(2), gather_items(1), lead=2)
    em.wait(lg=0); em.barrier()
    pwrite(2)
    for qt in range(3):
        s = 36 + 2*qt
        em(f"""v_add_f32 v{s}, v{s}, v{s+1}
        v_mov_b32 v{s+1}, v{s}
        v_permlane32_swap_b32 v{s+1}, v{s}
        v_add_f32 v{s}, v{s}, v{s+1}""")
    sb = KB[0]*16384 - 0x6000
    em(f"""v_add_u32 v23, {sb}, v23
    v_add_u32 v24, {sb}, v24""")
    em.wait_vtok(vtok[0], lg=0); em.barrier()
    st.mark()
    VB = 128; PB = 160
    def pv_reads(c):
        par = c & 1; blk = KB[c]
        va = [8, 42, 43][blk >> 2]; boff = (blk & 3) * 16384
        it = []
        for wp in range(4):
            for e in range(2):
                it.append(f"ds_read_b64_tr_b16 {vr(VB+par*16+wp*4+2*e, 2)}, v{va} offset:{boff+wp*4096+e*2048}")
            it.append(f"ds_read_b128 {vr(PB+par*16+wp*4, 4)}, v21 offset:{wp*8192+c*1024}")
        return it
    run(pv_reads(0))
    for c in range(8):
        par = c & 1
        main = []
        for wp in range(4):
            for qt in range(3):
                d = vr(64+16*qt, 16)
                B = ar(128*qt+(c*4+wp)*4, 4) if qt < 2 else vr(PB+par*16+wp*4, 4)
                main.append(f"{MF} {d}, {vr(VB+par*16+wp*4, 4)}, {B}, {'0' if (c == 0 and wp == 0) else d}")
        run(main[:7])
        fill = []
        if c < 7:
            em.wait_vtok(vtok[c+1], lg=0); em.barrier()
            fill = pv_reads(c+1)
        if c == 0:
            fill += [f"ds_write_b32 v23, v{36+2*qt} offset:{qt*512}" for qt in range(3)]
        if c == 2:
            fill += [f"ds_read_b128 {vr(44+4*qt, 4)}, v24 offset:{qt*512}" for qt in range(3)]
        if c == 4:
            for qt in range(3):
                t = 44 + 4*qt
                fill += [f"v_add_f32 v{t}, v{t}, v{t+1}", f"v_add_f32 v{t+2}, v{t+2}, v{t+3}", f"v_add_f32 v{t}, v{t}, v{t+2}",
                         f"v_rcp_f32 v{30+2*qt}, v{t}", f"v_mov_b32 v{31+2*qt}, v{30+2*qt}"]
        interleave(em, main[7:], fill, lead=3)
    st.mark()
    em("""s_mul_i32 s58, s57, 24576
    s_add_u32 s59, s58, 3072
    v_mul_u32_u24 v49, 0x1800, v1
    v_add_u32 v49, v49, v21""")
    for qt in range(3):
        b = 64 + 16*qt
        for j in range(8):
            em(f"v_pk_mul_f32 {vr(b+2*j, 2)}, {vr(b+2*j, 2)}, {vr(30+2*qt, 2)}")
        for j in range(8):
            em(f"v_cvt_pk_bf16_f32 v{b+j}, v{b+2*j}, v{b+2*j+1}")
        for e in range(2):
            em(f"buffer_store_dwordx4 {vr(b+4*e, 4)}, v49, s[36:39], s{58+e} offen offset:{qt*1024}")
    st.mark()
    st.store(50, 36, 67, STAMP_OFF)
    em.label("L_end_k1")
    em("s_endpgm")
    return em

def k2(stamps=False):
    em = Em()
    st = StampsE(em, 63, 60, stamps)
    prologue(em, 256, "L_end_k2")
    mapping(em)
    lane_common(em)
    em("""s_lshl_b32 s55, s42, 8
    s_lshl_b32 s54, s50, 21
    s_lshl_b32 s56, s41, 2
    s_add_u32 s56, s56, s50
    s_mul_i32 s56, s56, 196608""")
    gemm_setup(em, 2048, 55, "frag")
    em.wait(lg=0)
    srd(em, 24, 12, SZ_W); srd(em, 36, 18, SZ_WS)
    st.init(); st.mark()
    body = gemm_phase(em, st, 24, 36, 17, 12288, 54, 56, "frag")
    em(f"""s_lshl_b32 s58, s50, 3
    s_add_u32 s58, s58, s41
    s_lshl_b32 s58, s58, 3
    s_add_u32 s58, s58, s42
    s_lshl_b32 s58, s58, 2
    s_add_u32 s58, s58, s40
    s_mul_i32 s58, s58, 12288
    s_add_u32 s58, s58, {PART_OFF}
    s_add_u32 s59, s58, 4096
    s_add_u32 s57, s58, 8192""")
    body()
    st.mark()
    for qt in range(3):
        for j in range(4):
            em(f"buffer_store_dwordx4 {vr(ACC+16*qt+4*j, 4)}, v21, s[36:39], s{[58,59,57][qt]} offen offset:{j*1024}")
    st.mark()
    st.store(50, 36, 67, STAMP_OFF + (1 << 20))
    em.label("L_end_k2")
    em("s_endpgm")
    return em

def k3():
    em = Em()
    prologue(em, 768, "L_end_k3")
    em(f"""s_mul_hi_u32 s41, s2, 0x55555556
    s_mul_i32 s42, s41, 3
    s_sub_u32 s42, s2, s42
    s_lshr_b32 s43, s41, 5
    s_and_b32 s44, s41, 31
    s_lshl_b32 s45, s2, 12
    s_lshl_b32 s46, s40, 11
    s_add_u32 s45, s45, s46
    s_add_u32 s45, s45, {PART_OFF}
    s_add_u32 s46, s45, {768*4096}
    s_add_u32 s47, s45, {2*768*4096}
    s_add_u32 s48, s45, {3*768*4096}
    v_lshlrev_b32 v3, 4, v2""")
    em.wait(lg=0)
    srd(em, 36, 18, SZ_WS); srd(em, 20, 14, SZ_OUT)
    for kq in range(4):
        for j in range(2):
            em(f"buffer_load_dwordx4 {vr(8+kq*8+j*4, 4)}, v3, s[36:39], s{45+kq} offen offset:{j*1024}")
    em("""s_mul_i32 s49, s43, 96
    s_lshl_b32 s50, s42, 5
    s_add_u32 s49, s49, s50
    s_lshl_b32 s49, s49, 11
    s_lshl_b32 s50, s44, 6
    s_add_u32 s49, s49, s50
    s_lshl_b32 s50, s40, 5
    s_add_u32 s49, s49, s50
    v_and_b32 v4, 31, v2
    v_lshlrev_b32 v4, 11, v4
    v_lshrrev_b32 v5, 5, v2
    v_lshl_add_u32 v4, v5, 4, v4""")
    for j in range(4):
        em(f"v_pk_add_f32 {vr(8+2*j, 2)}, {vr(8+2*j, 2)}, {vr(16+2*j, 2)}")
    for j in range(4):
        em(f"v_pk_add_f32 {vr(24+2*j, 2)}, {vr(24+2*j, 2)}, {vr(32+2*j, 2)}")
    for j in range(4):
        em(f"v_pk_add_f32 {vr(8+2*j, 2)}, {vr(8+2*j, 2)}, {vr(24+2*j, 2)}")
    for j in range(4):
        em(f"v_cvt_pk_bf16_f32 v{40+j}, v{8+2*j}, v{9+2*j}")
    em("buffer_store_dwordx4 v[40:43], v4, s[20:23], s49 offen")
    em.label("L_end_k3")
    em("s_endpgm")
    return em

def build(path, stamps=False, which=("k1", "k2", "k3")):
    ks = []; ls = []
    if "k1" in which:
        e = k1(stamps); print("k1 instrs", e.ninstr, "nops", e.nnop)
        ks.append(kernel_text("mha_attn_kernel", e.text(), 512, 256)); ls.append(("mha_attn_kernel", 256, 256, 163840))
    if "k2" in which:
        e = k2(stamps); print("k2 instrs", e.ninstr, "nops", e.nnop)
        ks.append(kernel_text("mha_proj_kernel", e.text(), 256, 256)); ls.append(("mha_proj_kernel", 256, 256, 114688))
    if "k3" in which:
        e = k3(); print("k3 instrs", e.ninstr, "nops", e.nnop)
        ks.append(kernel_text("mha_red_kernel", e.text(), 48, 48)); ls.append(("mha_red_kernel", 768, 128, 0))
    open(path, "w").write(file_text(ls, ks))

if __name__ == "__main__":
    for name, rot in (("r00", (0, 0)), ("r10", (1, 0)), ("r11", (1, 1, 1)), ("r21", (2, 1, 1)), ("r42", (4, 2))):
        ROT = rot
        build(f"v2_{name}.s", stamps=True)
```

```python
import sys
import gen
from gen import *

NAME = "standalone__mha_block_cached__near_ridge_kernel"
FLAG_OFF = 8 << 20
MBOX_OFF = 9 << 20
SPIN = 20000

def run_items(em, items):
    for x in items:
        x() if callable(x) else em(x)

def fused(stamps=False, opt=None):
    opt = opt or {}
    em = Em()
    st = StampsE(em, 63, 60, stamps)
    prologue(em, 256, "L_end")
    mapping(em)
    lane_common(em)
    em("""s_lshl_b32 s54, s50, 3
    s_add_u32 s54, s54, s42
    s_lshl_b32 s55, s54, 8
    s_mul_i32 s56, s41, 196608
    s_lshl_b32 s57, s41, 5
    s_add_u32 s57, s57, s54""")
    em(f"""s_mul_i32 s80, s2, 12288
    s_lshl_b32 s82, s40, 10
    s_add_u32 s80, s80, s82
    s_add_u32 s80, s80, {MBOX_OFF}
    s_lshl_b32 s81, s57, 7
    s_lshl_b32 s82, s40, 2
    s_add_u32 s81, s81, s82
    s_add_u32 s81, s81, {FLAG_OFF}
    v_mov_b32 v64, -1
    v_mov_b32 v65, -1
    v_mov_b32 v66, -1
    v_mov_b32 v67, -1
    v_mov_b32 v80, 0
    v_add_u32 v81, 0x1000, v21
    v_add_u32 v82, 0x2000, v21""")
    gemm_setup(em, 8192, 55, "x")
    em.wait(lg=0)
    srd(em, 36, 18, SZ_WS)
    srd(em, 20, 4, SZ_X); srd(em, 24, 10, SZ_W)
    st.init()
    st.mark()
    def clears():
        for q, va in enumerate((21, 81, 82)):
            em(f"buffer_store_dwordx4 v[64:67], v{va}, s[36:39], s80 offen sc1")
        em("s_mov_b64 exec, 15")
        em("buffer_store_dword v80, v21, s[36:39], s81 offen sc1")
        em("buffer_load_dword v83, v21, s[36:39], s81 offen sc1")
        em("s_mov_b64 exec, -1")
        for q, va in enumerate((21, 81, 82)):
            em(f"buffer_load_dwordx4 {vr(68+4*q, 4)}, v{va}, s[36:39], s80 offen sc1")
    clears()
    ktok = {}; vtok = {}
    def kv_items(c, isv):
        srdn = 32 if isv else 28
        it = []
        for i in range(4):
            vo = 3 if isv else 4 + i
            l = f"buffer_load_dwordx4 v{vo}, s[{srdn}:{srdn+3}], s49 offen offset:{i*1024} nt lds"
            if i == 0:
                l = f"s_mov_b32 s49, {c*16384}\ns_add_u32 m0, s47, {KB[c]*16384}\n" + l
            it.append(l)
        def tok(): (vtok if isv else ktok)[c] = em.vtok()
        it.append(tok)
        return it
    ksched = {11: [0, 1], 12: [2], 13: [3], 14: [4, 5], 15: [6, 7]}
    extra = {s: sum((kv_items(c, False) for c in cs), []) for s, cs in ksched.items()}
    def arrive():
        em.raw("""    s_cmp_lg_u32 s40, 0
    s_cbranch_scc1 L_noarr
    s_mov_b64 exec, 1
    buffer_atomic_add v29, off, s[76:79], s83 sc1
    s_mov_b64 exec, -1
L_noarr:
    s_nop 4""")
    extra[0] = [arrive]
    body = gemm_phase(em, st, 24, 20, 19, 128, None, 56, "x", extra=extra)
    srd(em, 28, 6, SZ_KV); srd(em, 32, 8, SZ_KV)
    srd(em, 68, 12, SZ_W); srd(em, 72, 14, SZ_OUT); srd(em, 76, 16, 256)
    em(f"""s_lshl_b32 s58, s57, 17
    v_lshl_add_u32 v49, v1, 4, v44
    v_lshlrev_b32 v49, 8, v49
    v_add_u32 v49, s58, v49
    v_add_u32 v3, v49, v45
    v_and_b32 v50, 15, v2
    v_mov_b32 v29, 1
    s_lshl_b32 s83, s41, 5""")
    for i in range(4):
        em(f"""v_add_u32 v51, {4*i}, v44
        v_xor_b32 v51, v51, v50
        v_lshl_add_u32 v{4+i}, v51, 4, v49""")
    em("""v_lshl_add_u32 v49, v48, 2, v47
    v_lshl_add_u32 v8, v49, 8, v46
    v_add_u32 v42, 0x10000, v8
    v_add_u32 v43, 0x20000, v8""")
    em("""v_xor_b32 v49, v48, v50
    v_lshlrev_b32 v49, 4, v49
    v_lshl_add_u32 v49, v50, 8, v49
    v_lshl_add_u32 v49, v1, 12, v49
    v_bfe_u32 v51, v2, 4, 1""")
    for kt in range(4):
        d = (KB[2*kt+1] - KB[2*kt]) * 16384
        em(f"""v_mul_i32_i24 v52, {d if -16 <= d <= 64 else hex(d & 0xffffffff)}, v51
        v_add_u32 v52, v49, v52
        v_add_u32 v{9+kt}, {KB[2*kt]*16384}, v52""")
    em(f"""v_lshl_add_u32 v22, v1, 13, v21
    v_and_b32 v49, 31, v2
    v_lshlrev_b32 v49, 4, v49
    v_add_u32 v24, 0x6000, v49
    v_lshl_add_u32 v23, v1, 2, v24
    v_lshl_add_u32 v28, v1, 11, v21
    s_mov_b32 s64, {f32hex(C_SCALE)}
    s_mov_b32 s65, {f32hex(C_SCALE)}
    s_mov_b32 s66, {f32hex(-C_SCALE)}""")
    em(f"""s_and_b32 s84, s2, 1
    s_bfe_u32 s85, s2, 0x10001
    s_lshl_b32 s85, s85, 3
    s_add_u32 s85, s85, s42
    s_lshl_b32 s86, s84, 22
    s_lshl_b32 s82, s85, 7
    s_add_u32 s86, s86, s82
    s_lshl_b32 s87, s41, 5
    s_lshl_b32 s82, s84, 4
    s_add_u32 s87, s87, s82
    s_lshl_b32 s82, s40, 2
    s_add_u32 s87, s87, s82
    s_lshl_b32 s90, s87, 7
    s_add_u32 s90, s90, {FLAG_OFF}
    s_mul_i32 s87, s87, 24576
    s_xor_b32 s88, s2, 1
    s_mul_i32 s88, s88, 12288
    s_lshl_b32 s82, s40, 10
    s_add_u32 s88, s88, s82
    s_add_u32 s88, s88, {MBOX_OFF}
    s_mul_i32 s89, s41, 196608
    s_lshl_b32 s82, s85, 7
    s_add_u32 s89, s89, s82
    s_lshl_b32 s82, s84, 6
    s_add_u32 s89, s89, s82
    s_lshr_b32 s82, s40, 1
    s_lshl_b32 s82, s82, 5
    s_add_u32 s89, s89, s82
    s_and_b32 s82, s40, 1
    s_lshl_b32 s82, s82, 3
    s_add_u32 s89, s89, s82
    v_lshl_add_u32 v49, v48, 3, v47
    v_lshlrev_b32 v49, 7, v49
    v_and_b32 v50, 63, v46
    v_add_u32 v49, v49, v50
    v_bfe_u32 v50, v2, 3, 1
    v_lshl_add_u32 v49, v50, 6, v49
    v_lshl_add_u32 v56, v1, 12, v49
    v_lshrrev_b32 v49, 3, v2
    v_lshl_add_u32 v49, v1, 9, v49
    v_lshlrev_b32 v49, 11, v49
    v_and_b32 v50, 7, v2
    v_bfe_u32 v51, v2, 4, 1
    v_lshlrev_b32 v51, 2, v51
    v_xor_b32 v50, v50, v51
    v_lshl_add_u32 v57, v50, 4, v49
    s_lshl_b32 s82, s53, 9
    v_lshl_add_u32 v49, v1, 7, v2
    v_add_u32 v49, s82, v49
    v_lshlrev_b32 v58, 11, v49
    v_bfe_u32 v49, v2, 2, 2
    v_and_b32 v50, 3, v2
    v_lshlrev_b32 v50, 2, v50
    v_lshl_add_u32 v59, v49, 7, v50
    v_and_b32 v49, 31, v2
    v_lshlrev_b32 v49, 11, v49
    v_lshl_add_u32 v60, v48, 4, v49""")
    body()
    st.mark()
    for qt in range(3):
        b = ACC + 16*qt
        for j in range(8):
            em(f"v_cvt_pk_bf16_f32 v{b+j}, v{b+2*j}, v{b+2*j+1}")
        for e in range(2):
            em(f"ds_write_b128 v28, {vr(b+4*e, 4)} offset:{qt*8192+e*1024}")
    def kdrain_items(kt):
        it = []
        def w(): em.wait_vtok(ktok[2*kt+1])
        it.append(w)
        for ks in range(8):
            if ks == 0:
                it.append(f"ds_read_b128 {ar(32*kt, 4)}, v{9+kt}")
            else:
                it.append(f"v_xor_b32 v{12+ks}, {ks*32}, v{9+kt}\nds_read_b128 {ar(32*kt+4*ks, 4)}, v{12+ks}")
        return it
    def run(items): run_items(em, items)
    em.wait(lg=0); em.barrier()
    order = [(qt, ks) for ks in range(8) for qt in range(3)]
    for qt, ks in order:
        em(f"ds_read_b128 {ar(128+(qt*8+ks)*4, 4)}, v21 offset:{(qt*8+ks)*1024}")
    run(kdrain_items(0))
    st.mark()
    def S(qt, kt): return 64 + (qt*4 + kt)*16
    def max_items(kt):
        it = []
        for qt in range(3):
            b = S(qt, kt); m = 25 + qt
            for j in range(8):
                if kt == 0 and j == 0:
                    it.append(f"v_max_f32 v{m}, v{b}, v{b+1}")
                else:
                    it.append(f"v_max3_f32 v{m}, v{b+2*j}, v{b+2*j+1}, v{m}")
        return it
    for kt in range(4):
        main = []
        for ks in range(8):
            for qt in range(3):
                d = vr(S(qt, kt), 16)
                main.append(f"{MF} {d}, {ar(32*kt+4*ks, 4)}, {ar(128+(qt*8+ks)*4, 4)}, {'0' if ks == 0 else d}")
        em.wait(lg=0)
        fill = kv_items(2*kt, True) + kv_items(2*kt+1, True)
        mx = max_items(kt-1) if kt > 0 else []
        interleave(em, main[:4], fill[:5])
        interleave(em, main[4:19], fill[5:] + mx)
        interleave(em, main[19:], kdrain_items(kt+1) if kt < 3 else [], lead=3)
    em(f"""buffer_load_dword v61, v58, s[68:71], s86 offen
    v_add_u32 v58, {64*2048}, v58
    buffer_load_dword v62, v58, s[68:71], s86 offen
    buffer_load_dword v17, off, s[76:79], s83 sc1""")
    st.mark()
    run(max_items(3))
    for qt in range(3):
        m = 25 + qt
        em(f"""v_mov_b32 v{13+qt}, v{m}
        v_permlane32_swap_b32 v{13+qt}, v{m}
        v_max_f32 v{m}, v{13+qt}, v{m}
        ds_write_b32 v23, v{m} offset:{qt*512}""")
    em.wait(lg=0); em.barrier()
    for qt in range(3):
        em(f"ds_read_b128 {vr(44+4*qt, 4)}, v24 offset:{qt*512}")
    for qt in range(3):
        t = 44 + 4*qt
        em(f"""v_max3_f32 v{t}, v{t}, v{t+1}, v{t+2}
        v_max_f32 v{t}, v{t}, v{t+3}
        v_mul_f32 v{30+2*qt}, s66, v{t}
        v_mul_f32 v{31+2*qt}, s66, v{t}""")
    em.wait(lg=0); em.barrier()
    st.mark()
    def exp_items(qt):
        it = []
        sm = vr(36+2*qt, 2)
        for kt in range(4):
            b = S(qt, kt)
            for j in range(8):
                it.append(f"v_pk_fma_f32 {vr(b+2*j, 2)}, {vr(b+2*j, 2)}, s[64:65], {vr(30+2*qt, 2)}")
            for j in range(16):
                it.append(f"v_exp_f32 v{b+j}, v{b+j}")
            for j in range(8):
                if kt == 0 and j == 0:
                    it.append(f"v_pk_add_f32 {sm}, {vr(b, 2)}, {vr(b+2, 2)}")
                elif not (kt == 0 and j == 1):
                    it.append(f"v_pk_add_f32 {sm}, {sm}, {vr(b+2*j, 2)}")
                it.append(f"v_cvt_pk_bf16_f32 v{b+j}, v{b+2*j}, v{b+2*j+1}")
        return it
    def pwrite(qt):
        for kt in range(4):
            b = S(qt, kt)
            for e in range(2):
                em(f"ds_write_b128 v22, {vr(b+4*e, 4)} offset:{(2*kt+e)*1024}")
    def gather_items(qt):
        return [f"ds_read_b128 {ar(128*qt+(c*4+wp)*4, 4)}, v21 offset:{wp*8192+c*1024}" for c in range(8) for wp in range(4)]
    run(exp_items(0)); pwrite(0)
    em.wait(lg=0); em.barrier()
    interleave(em, exp_items(1), gather_items(0), lead=2)
    em.wait(lg=0); em.barrier()
    pwrite(1)
    em.wait(lg=0); em.barrier()
    interleave(em, exp_items(2), gather_items(1), lead=2)
    em.wait(lg=0); em.barrier()
    pwrite(2)
    for qt in range(3):
        s = 36 + 2*qt
        em(f"""v_add_f32 v{s}, v{s}, v{s+1}
        v_mov_b32 v{s+1}, v{s}
        v_permlane32_swap_b32 v{s+1}, v{s}
        v_add_f32 v{s}, v{s}, v{s+1}""")
    sb = KB[0]*16384 - 0x6000
    em(f"""v_add_u32 v23, {sb}, v23
    v_add_u32 v24, {sb}, v24""")
    for i in range(4):
        em(f"v_add_u32 v{3+i}, {i*(16384-1024)}, v57")
    for seg in range(3):
        em(f"""v_add_u32 v{9+2*seg}, {seg*65536}, v56
        v_xor_b32 v{10+2*seg}, 64, v{9+2*seg}""")
    em.wait_vtok(vtok[0], lg=0); em.barrier()
    st.mark()
    WB = [KB[1], KB[2], KB[3], KB[4], KB[5], KB[6]]
    WB += [KB[1], KB[2], KB[3], KB[4], KB[5], KB[6], KB[7], 0, 1, KB[0]]
    wtok = {}
    def wo_items(g):
        it = []
        for i in range(4):
            l = f"buffer_load_dwordx4 v{3+i}, s[68:71], s49 offen offset:{i*1024} lds"
            if i == 0:
                l = f"s_add_u32 s49, s86, {g*65536}\ns_add_u32 m0, s47, {WB[g]*16384}\n" + l
            it.append(l)
        def tok(): wtok[g] = em.vtok()
        it.append(tok)
        return it
    def wdrain_items(g, wait=True):
        blk = WB[g]; seg = blk >> 2; boff = (blk & 3) * 16384
        it = []
        if wait:
            it.append(lambda: em.wait_vtok(wtok[g]))
        for k2 in range(2):
            for nt in range(2):
                for e in range(2):
                    it.append(f"ds_read_b64_tr_b16 {ar(16*g+(k2*2+nt)*4+2*e, 2)}, v{9+2*seg+nt} offset:{boff+k2*2048+e*512}")
        return it
    VB = 128; PB = 160
    def pv_reads(c):
        par = c & 1; blk = KB[c]
        va = [8, 42, 43][blk >> 2]; boff = (blk & 3) * 16384
        it = []
        for wp in range(4):
            for e in range(2):
                it.append(f"ds_read_b64_tr_b16 {vr(VB+par*16+wp*4+2*e, 2)}, v{va} offset:{boff+wp*4096+e*2048}")
            it.append(f"ds_read_b128 {vr(PB+par*16+wp*4, 4)}, v21 offset:{wp*8192+c*1024}")
        return it
    run(pv_reads(0))
    for c in range(8):
        par = c & 1
        main = []
        for wp in range(4):
            for qt in range(3):
                d = vr(64+16*qt, 16)
                B = ar(128*qt+(c*4+wp)*4, 4) if qt < 2 else vr(PB+par*16+wp*4, 4)
                main.append(f"{MF} {d}, {vr(VB+par*16+wp*4, 4)}, {B}, {'0' if (c == 0 and wp == 0) else d}")
        run(main[:7])
        fill = []
        if c < 7:
            em.wait_vtok(vtok[c+1], lg=0); em.barrier()
            fill = pv_reads(c+1)
            if c >= 1:
                fill += wo_items(c-1)
        if c == 0:
            fill += [f"ds_write_b32 v23, v{36+2*qt} offset:{qt*512}" for qt in range(3)]
        if c == 2:
            fill += [f"ds_read_b128 {vr(44+4*qt, 4)}, v24 offset:{qt*512}" for qt in range(3)]
        if c == 4:
            for qt in range(3):
                t = 44 + 4*qt
                fill += [f"v_add_f32 v{t}, v{t}, v{t+1}", f"v_add_f32 v{t+2}, v{t+2}, v{t+3}", f"v_add_f32 v{t}, v{t}, v{t+2}",
                         f"v_rcp_f32 v{30+2*qt}, v{t}", f"v_mov_b32 v{31+2*qt}, v{30+2*qt}"]
        interleave(em, main[7:], fill, lead=3)
    st.mark()
    em("""s_mul_i32 s58, s57, 24576
    s_add_u32 s59, s58, 8192
    s_add_u32 s82, s58, 16384
    v_lshl_add_u32 v49, v1, 11, v21""")
    for qt in range(3):
        b = 64 + 16*qt
        for j in range(8):
            em(f"v_pk_mul_f32 {vr(b+2*j, 2)}, {vr(b+2*j, 2)}, {vr(30+2*qt, 2)}")
        for j in range(8):
            em(f"v_cvt_pk_bf16_f32 v{b+j}, v{b+2*j}, v{b+2*j+1}")
        for e in range(2):
            em(f"buffer_store_dwordx4 {vr(b+4*e, 4)}, v49, s[36:39], s{[58,59,82][qt]} offen offset:{e*1024} sc1")
    for g in range(6):
        run(wdrain_items(g))
    em.wait(vm=0)
    em("""s_mov_b64 exec, 1
    buffer_store_dword v29, off, s[36:39], s81 sc1
    s_mov_b64 exec, -1""")
    st.mark()
    em.wait(lg=0)
    for g in range(6, 12):
        run(wo_items(g))
    em.barrier()
    for g in range(12, 16):
        run(wo_items(g))
    em("v_readfirstlane_b32 s91, v17")
    em(f"s_movk_i32 s92, {SPIN}")
    em.raw(f"""    s_cmp_eq_u32 s91, 32
    s_cbranch_scc1 L_cnt_ok
L_cnt:
    buffer_load_dword v17, off, s[76:79], s83 sc1
    s_waitcnt vmcnt(0)
    v_readfirstlane_b32 s91, v17
    s_cmp_eq_u32 s91, 32
    s_cbranch_scc1 L_cnt_ok
    s_sleep 4
    s_sub_u32 s92, s92, 1
    s_cmp_lg_u32 s92, 0
    s_cbranch_scc1 L_cnt
L_cnt_ok:
    s_movk_i32 s92, {SPIN}
L_flag:
    buffer_load_dword v17, v59, s[36:39], s90 offen sc1
    s_waitcnt vmcnt(0)
    v_cmp_ne_u32 vcc, 1, v17
    s_cbranch_vccz L_flag_ok
    s_sleep 1
    s_sub_u32 s92, s92, 1
    s_cmp_lg_u32 s92, 0
    s_cbranch_scc1 L_flag
L_flag_ok:""")
    em.vm = []
    st.mark()
    RING = 128; NR = 24
    ACC2 = [64, 96, 224]
    seq = [(qt, kk) for qt in range(3) for kk in range(32)]
    def oload(i):
        qt, kk = seq[i]
        hh, ks = kk >> 3, kk & 7
        l = ""
        if (ks & 3) == 0:
            l = f"s_add_u32 s93, s87, {hh*24576 + qt*8192 + (ks >> 2)*4096}\n"
        return l + f"buffer_load_dwordx4 {vr(RING + (i % NR)*4, 4)}, v21, s[36:39], s93 offen offset:{(ks & 3)*1024} sc1"
    for i in range(NR):
        em(oload(i))
    for g in range(6, 16):
        run(wdrain_items(g, wait=False))
    em("""v_lshl_add_u32 v20, v1, 11, v21
    v_lshl_add_u32 v7, v1, 13, v21
    v_add_u32 v19, 0x10000, v20
    v_add_u32 v18, 0x10000, v7""")
    def red_writes(qt):
        it = []
        va, base = (20, qt*32768) if qt < 2 else (19, 0)
        for nt in range(2):
            for dw in range(4):
                it.append(f"ds_write_b128 v{va}, {vr(ACC2[qt]+16*nt+4*dw, 4)} offset:{base+dw*8192+nt*1024}")
        return it
    em.wait(lg=0); em.barrier()
    st.mark()
    for qt in range(3):
        fill = red_writes(qt-1) if qt > 0 else []
        for kk in range(32):
            i = qt*32 + kk
            for nt in range(2):
                d = vr(ACC2[qt] + 16*nt, 16)
                em(f"{MF} {d}, {ar((kk*2+nt)*4, 4)}, {vr(RING + (i % NR)*4, 4)}, {'0' if kk == 0 else d}")
            if i + NR < len(seq):
                em(oload(i + NR))
            if kk >= 2 and fill:
                em(fill.pop(0))
    st.mark()
    run(red_writes(2))
    em.wait(lg=0); em.barrier()
    for qt in range(3):
        va, base = (7, qt*32768) if qt < 2 else (18, 0)
        for nt in range(2):
            for src in range(4):
                em(f"ds_read_b128 {vr(128+(qt*2+nt)*16+src*4, 4)}, v{va} offset:{base+src*2048+nt*1024}")
    def tail(kh):
        for qt in range(3):
            for nt in (1-kh, kh):
                R = 128 + (qt*2+nt)*16
                for p in range(2):
                    em(f"v_pk_add_f32 {vr(R+2*p, 2)}, {vr(R+2*p, 2)}, {vr(R+4+2*p, 2)}")
                    em(f"v_pk_add_f32 {vr(R+8+2*p, 2)}, {vr(R+8+2*p, 2)}, {vr(R+12+2*p, 2)}")
                for p in range(2):
                    em(f"v_pk_add_f32 {vr(R+2*p, 2)}, {vr(R+2*p, 2)}, {vr(R+8+2*p, 2)}")
                if nt != kh:
                    em(f"buffer_store_dwordx4 {vr(R, 4)}, v{[21,81,82][qt]}, s[36:39], s88 offen sc1")
                else:
                    for p in range(4):
                        em(f"v_mov_b32 v{64+4*qt+p}, v{R+p}")
    em("""v_add_u32 v81, 0x1000, v21
    v_add_u32 v82, 0x2000, v21""")
    em.wait(lg=0)
    em("s_cmp_eq_u32 s84, 0")
    em("s_cbranch_scc0 L_kh1")
    save = (list(em.vm), list(em.hist))
    tail(0)
    em("s_branch L_tail")
    em.label("L_kh1")
    em.vm, em.hist = list(save[0]), list(save[1])
    tail(1)
    em.label("L_tail")
    em("s_nop 4")
    st.mark()
    em(f"s_movk_i32 s92, {SPIN}")
    em.raw(f"""L_mb:
    buffer_load_dwordx4 v[96:99], v21, s[36:39], s80 offen sc1
    buffer_load_dwordx4 v[100:103], v81, s[36:39], s80 offen sc1
    buffer_load_dwordx4 v[104:107], v82, s[36:39], s80 offen sc1
    s_waitcnt vmcnt(0)
    v_max_u32 v108, v96, v97
    v_max3_u32 v108, v98, v99, v108
    v_max3_u32 v108, v100, v101, v108
    v_max3_u32 v108, v102, v103, v108
    v_max3_u32 v108, v104, v105, v108
    v_max3_u32 v108, v106, v107, v108
    v_cmp_eq_u32 vcc, -1, v108
    s_cbranch_vccz L_mb_ok
    s_sleep 1
    s_sub_u32 s92, s92, 1
    s_cmp_lg_u32 s92, 0
    s_cbranch_scc1 L_mb
L_mb_ok:""")
    em.vm = []
    st.mark()
    em(f"""s_add_u32 s93, s89, {32*2048}
    s_add_u32 s94, s89, {64*2048}""")
    for qt in range(3):
        for p in range(2):
            em(f"v_pk_add_f32 {vr(64+4*qt+2*p, 2)}, {vr(64+4*qt+2*p, 2)}, {vr(96+4*qt+2*p, 2)}")
        for p in range(2):
            em(f"v_cvt_pk_bf16_f32 v{112+2*qt+p}, v{64+4*qt+2*p}, v{65+4*qt+2*p}")
        em(f"buffer_store_dwordx2 {vr(112+2*qt, 2)}, v60, s[72:75], s{[89,93,94][qt]} offen")
    st.mark()
    st.store(50, 36, 67, STAMP_OFF)
    em.label("L_end")
    em("s_endpgm")
    return em

def build(path, stamps=False, opt=None):
    e = fused(stamps, opt); print(path, "instrs", e.ninstr, "nops", e.nnop)
    open(path, "w").write(file_text([(NAME, 256, 256, 163840)], [kernel_text(NAME, e.text(), 512, 256)]))

if __name__ == "__main__":
    build("v3a.s"); build("v3a_st.s", stamps=True)
```

```python
from gen import *
NAME = "standalone__mha_block_cached__near_ridge_kernel"
def build(path):
    em = Em()
    st = StampsE(em, 63, 60, True)
    prologue(em, 256, "L_end")
    em.wait(lg=0)
    srd(em, 36, 18, SZ_WS)
    for i in range(64, 256): em(f"v_mov_b32 v{i}, 0")
    st.init(); st.mark()
    def mf(i, src="a"):
        d = vr(64 + 16*(i % 4), 16)
        if src == "a": return f"{MF} {d}, {ar(4*(i%8), 4)}, {ar(128+4*(i%8), 4)}, {d}"
        return f"{MF} {d}, {vr(224+4*(i%4), 4)}, {vr(240+4*(i%4), 4)}, {d}"
    ex = lambda k: f"v_exp_f32 v{128+k%64}, v{128+k%64}"
    pk = lambda k: f"v_pk_fma_f32 {vr(128+2*(k%32), 2)}, {vr(128+2*(k%32), 2)}, s[64:65], {vr(30, 2)}"
    mx = lambda k: f"v_max3_f32 v{128+k%64}, v{192+k%16}, v{208+k%16}, v{128+k%64}"
    cv = lambda k: f"v_cvt_pk_bf16_f32 v{128+k%64}, v{192+k%16}, v{208+k%16}"
    fm = lambda k: f"v_fma_f32 v{128+k%64}, v{128+k%64}, s64, v30"
    tests = [(1, None, 0), (0, ex, 2), (1, ex, 2), (1, ex, 1), (0, pk, 4), (1, pk, 4), (1, pk, 2), (0, mx, 6), (1, mx, 6), (0, cv, 6), (1, cv, 6), (0, fm, 6), (1, fm, 6), (2, ex, 2), (2, mx, 6)]
    for m, f, n in tests:
        k = 0
        for i in range(32):
            if m: em(mf(i, "a" if m == 1 else "v"))
            for _ in range(n):
                em(f(k)); k += 1
        em("s_nop 15"); em("s_nop 15")
        em("v_mov_b32 v62, v64"); em("v_mov_b32 v62, v112")
        st.mark()
    st.store(50, 36, 67, STAMP_OFF)
    em.label("L_end")
    em("s_endpgm")
    open(path, "w").write(file_text([(NAME, 256, 256, 163840)], [kernel_text(NAME, em.text(), 512, 256)]))
build("mb8.s")
```

```python
import sys
import gen
from gen import *

NAME = "standalone__mha_block_cached__near_ridge_kernel"
FLAG_OFF = 8 << 20
MBOX_OFF = 9 << 20
SPIN = 20000
KB = [7, 8, 9, 4, 5, 2, 3, 6]
XS = 6*16384

def run_items(em, items):
    for x in items:
        x() if callable(x) else em(x)

def weave2(a, b):
    out = []; na, nb = len(a), len(b); j = 0
    for i, x in enumerate(a):
        out.append(x)
        tgt = (nb * (i + 1) + na - 1) // na
        while j < tgt:
            out.append(b[j]); j += 1
    return out + list(b[j:])

def fused(stamps=False, opt=None):
    opt = opt or {}
    em = Em()
    st = StampsE(em, 63, 60, stamps)
    prologue(em, 256, "L_end")
    mapping(em)
    em("""s_lshl_b32 s54, s50, 3
    s_add_u32 s54, s54, s42
    s_lshl_b32 s57, s41, 5
    s_add_u32 s57, s57, s54
    s_lshl_b32 s58, s57, 17
    v_lshrrev_b32 v44, 4, v2
    v_lshl_add_u32 v49, v1, 4, v44
    v_lshlrev_b32 v49, 8, v49
    v_add_u32 v49, s58, v49
    v_mov_b32 v3, v49
    v_and_b32 v50, 15, v2""")
    for i in range(4):
        em(f"""v_add_u32 v51, {4*i}, v44
        v_xor_b32 v51, v51, v50
        v_lshl_add_u32 v{4+i}, v51, 4, v49""")
    em.wait(lg=0)
    srd(em, 28, 6, SZ_KV)
    KBK = [7, 8, 9, 3, 1, 2, 7, 8]
    ktok = {}; vtok = {}
    def kv_items(c, isv):
        srdn = 32 if isv else 28
        it = []
        for i in range(4):
            vo = 3 if isv else 4 + i
            l = f"buffer_load_dwordx4 v{vo}, s[{srdn}:{srdn+3}], s49 offen offset:{i*1024} nt lds"
            if i == 0:
                l = f"s_mov_b32 s49, {c*16384}\ns_add_u32 m0, s47, {(KB if isv else KBK)[c]*16384}\n" + l
            it.append(l)
        def tok(): (vtok if isv else ktok)[c] = em.vtok()
        it.append(tok)
        return it
    st.init()
    st.mark()
    for c in range(6):
        run_items(em, kv_items(c, False))
    lane_common(em)
    em("""s_lshl_b32 s55, s54, 8
    s_mul_i32 s56, s41, 196608
    v_add_u32 v3, v3, v45""")
    em(f"""s_mul_i32 s80, s2, 12288
    s_lshl_b32 s82, s40, 10
    s_add_u32 s80, s80, s82
    s_add_u32 s80, s80, {MBOX_OFF}
    s_add_u32 s97, s80, 4096
    s_add_u32 s98, s80, 8192
    s_mul_i32 s58, s57, 24576
    s_add_u32 s59, s58, 8192
    s_add_u32 s81, s58, 16384
    v_mov_b32 v252, -1
    v_mov_b32 v253, -1
    v_mov_b32 v254, -1
    v_mov_b32 v255, -1
    v_lshl_add_u32 v28, v1, 11, v21""")
    srd(em, 36, 18, SZ_WS)
    clr = []
    for so in (58, 59, 81):
        for e in range(2):
            clr.append(f"buffer_store_dwordx4 v[252:255], v28, s[36:39], s{so} offen offset:{e*1024} sc1")
    for so in (80, 97, 98):
        clr.append(f"buffer_store_dwordx4 v[252:255], v21, s[36:39], s{so} offen sc1")
    gemm_setup(em, 8192, 55, "x")
    srd(em, 20, 4, SZ_X); srd(em, 24, 10, SZ_W)
    em("""v_and_b32 v50, 15, v2
    v_xor_b32 v49, v48, v50
    v_lshlrev_b32 v49, 4, v49
    v_lshl_add_u32 v49, v50, 8, v49
    v_lshl_add_u32 v49, v1, 12, v49
    v_bfe_u32 v51, v2, 4, 1""")
    for kt in range(4):
        d = (KBK[2*kt+1] - KBK[2*kt]) * 16384
        em(f"""v_mul_i32_i24 v52, {d if -16 <= d <= 64 else hex(d & 0xffffffff)}, v51
        v_add_u32 v52, v49, v52
        v_add_u32 v{9+kt}, {KBK[2*kt]*16384}, v52""")
    def kdrain_items(kt):
        it = []
        def w(): em.wait_vtok(ktok[2*kt+1])
        it.append(w)
        for ks in range(8):
            if ks == 0:
                it.append(f"ds_read_b128 {ar(32*kt, 4)}, v{9+kt}")
            else:
                it.append(f"v_xor_b32 v{12+ks}, {ks*32}, v{9+kt}\nds_read_b128 {ar(32*kt+4*ks, 4)}, v{12+ks}")
        return it
    lg0 = lambda: em.wait(lg=0)
    pre = {0: kdrain_items(0) + [lg0] + kv_items(6, False) + kv_items(7, False),
           1: kdrain_items(1) + kdrain_items(2) + [lg0]}
    ksched = opt.get("vsched", {3: [0], 6: [1], 9: [2], 13: [3], 15: [4]})
    extra = {s: sum((kv_items(c, True) for c in cs), []) for s, cs in ksched.items()}
    def arrive():
        em.raw("""    s_cmp_lg_u32 s40, 0
    s_cbranch_scc1 L_noarr
    s_mov_b64 exec, 1
    buffer_atomic_add v29, off, s[76:79], s83 sc1
    s_mov_b64 exec, -1
L_noarr:
    s_nop 4""")
    extra[0] = kdrain_items(3) + extra.get(0, [])
    csched = opt.get("csched", [1, 2, 3, 4, 5, 6, 7, 8, 9])
    for s, c in zip(csched, clr):
        extra[s] = [c] + extra.get(s, [])
    sa = max(csched) + 4
    assert sa <= 15
    extra[sa] = [arrive] + extra.get(sa, [])
    body = gemm_phase(em, st, 24, 20, 19, 128, None, 56, "x", extra=extra, pre=pre)
    srd(em, 32, 8, SZ_KV)
    srd(em, 68, 12, SZ_W); srd(em, 72, 14, SZ_OUT); srd(em, 76, 16, 256)
    em("""v_mov_b32 v29, 1
    s_lshl_b32 s83, s41, 5""")
    em("""v_lshl_add_u32 v49, v48, 2, v47
    v_lshl_add_u32 v8, v49, 8, v46
    v_lshl_add_u32 v8, v1, 12, v8
    v_add_u32 v8, 0x8000, v8""")
    em(f"""v_lshl_add_u32 v22, v1, 13, v21
    v_lshl_add_u32 v35, v1, 12, v21
    v_and_b32 v49, 31, v2
    v_lshlrev_b32 v49, 3, v49
    v_lshl_add_u32 v49, v1, 12, v49
    v_add_u32 v23, {XS}, v49
    v_xor_b32 v24, 0x1000, v23
    v_xor_b32 v31, 0x2000, v23
    v_xor_b32 v33, 0x3000, v23
    s_mov_b32 s64, {f32hex(C_SCALE)}
    s_mov_b32 s66, {f32hex(-C_SCALE)}""")
    em(f"""s_bfe_u32 s84, s2, 0x10001
    s_xor_b32 s84, s84, 1
    s_and_b32 s85, s2, 1
    s_lshl_b32 s85, s85, 3
    s_add_u32 s85, s85, s42
    s_lshl_b32 s86, s84, 22
    s_lshl_b32 s82, s85, 7
    s_add_u32 s86, s86, s82
    s_lshl_b32 s87, s41, 5
    s_lshl_b32 s82, s84, 4
    s_add_u32 s87, s87, s82
    s_lshl_b32 s82, s40, 2
    s_add_u32 s87, s87, s82
    s_mul_i32 s87, s87, 24576
    s_xor_b32 s88, s2, 2
    s_mul_i32 s88, s88, 12288
    s_lshl_b32 s82, s40, 10
    s_add_u32 s88, s88, s82
    s_add_u32 s88, s88, {MBOX_OFF}
    s_add_u32 s95, s88, 4096
    s_add_u32 s96, s88, 8192
    s_mul_i32 s89, s41, 196608
    s_lshl_b32 s82, s85, 7
    s_add_u32 s89, s89, s82
    s_lshl_b32 s82, s84, 6
    s_add_u32 s89, s89, s82
    s_lshr_b32 s82, s40, 1
    s_lshl_b32 s82, s82, 5
    s_add_u32 s89, s89, s82
    s_and_b32 s82, s40, 1
    s_lshl_b32 s82, s82, 3
    s_add_u32 s89, s89, s82
    v_lshl_add_u32 v49, v48, 3, v47
    v_lshlrev_b32 v49, 7, v49
    v_and_b32 v50, 63, v46
    v_add_u32 v49, v49, v50
    v_bfe_u32 v50, v2, 3, 1
    v_lshl_add_u32 v49, v50, 6, v49
    v_lshl_add_u32 v56, v1, 12, v49
    v_lshrrev_b32 v49, 3, v2
    v_lshl_add_u32 v49, v1, 9, v49
    v_lshlrev_b32 v49, 11, v49
    v_and_b32 v50, 7, v2
    v_bfe_u32 v51, v2, 4, 1
    v_lshlrev_b32 v51, 2, v51
    v_xor_b32 v50, v50, v51
    v_lshl_add_u32 v57, v50, 4, v49
    s_lshl_b32 s82, s53, 9
    v_lshl_add_u32 v49, v1, 7, v2
    v_add_u32 v49, s82, v49
    v_lshlrev_b32 v58, 11, v49
    v_bfe_u32 v49, v2, 2, 2
    v_and_b32 v50, 3, v2
    v_lshlrev_b32 v50, 2, v50
    v_lshl_add_u32 v59, v49, 7, v50
    v_and_b32 v49, 31, v2
    v_lshlrev_b32 v49, 11, v49
    v_lshl_add_u32 v60, v48, 4, v49""")
    body()
    st.mark()
    def run(items): run_items(em, items)
    lg0b = lambda: (em.wait(lg=0), em.barrier())
    for qt in range(3):
        b = ACC + 16*qt
        for j in range(8):
            em(f"v_cvt_pk_bf16_f32 v{b+j}, v{b+2*j}, v{b+2*j+1}")
        for e in range(2):
            em(f"ds_write_b128 v28, {vr(b+4*e, 4)} offset:{qt*8192+e*1024}")
    for i in range(4):
        em(f"v_add_u32 v{4+i}, {i*(16384-1024)}, v57")
    for seg in range(3):
        em(f"""v_add_u32 v{9+2*seg}, {seg*65536}, v56
        v_xor_b32 v{10+2*seg}, 64, v{9+2*seg}""")
    VA = [[8, 42, 43, 15], [16, 17, 18, 29]]
    for t in range(1, 4):
        em(f"v_xor_b32 v{VA[0][t]}, {t*64}, v8")
    for t in range(4):
        em(f"v_add_u32 v{VA[1][t]}, 0x10000, v{VA[0][t]}")
    lg0b()
    for qt in range(3):
        for ks in range(8):
            em(f"ds_read_b128 {ar(128+(qt*8+ks)*4, 4)}, v21 offset:{(qt*8+ks)*1024}")
    st.mark()
    def S(qt, kt): return 64 + (qt*4 + kt)*16
    def s_mf(qt):
        it = []
        for kp in range(2):
            for ks in range(8):
                for kt in (2*kp, 2*kp+1):
                    d = vr(S(qt, kt), 16)
                    it.append(f"{MF} {d}, {ar(32*kt+4*ks, 4)}, {ar(128+(qt*8+ks)*4, 4)}, {'0' if ks == 0 else d}")
        return it
    def max_items(qt, kts):
        it = []
        m = 25 + qt
        for kt in kts:
            b = S(qt, kt)
            for j in range(8):
                if kt == 0 and j == 0:
                    it.append(f"v_max_f32 v{m}, v{b}, v{b+1}")
                else:
                    it.append(f"v_max3_f32 v{m}, v{b+2*j}, v{b+2*j+1}, v{m}")
        return it
    def max_fin(qt):
        m = 25 + qt
        return [f"v_mov_b32 v20, v{m}", f"v_permlane32_swap_b32 v20, v{m}", f"v_max_f32 v{m}, v20, v{m}",
                f"v_mul_f32 v{30+2*qt}, s66, v{m}"]
    def exp_items(qt):
        it = []
        sm = vr(36+2*qt, 2)
        for kt in range(4):
            b = S(qt, kt)
            s0 = 36 + 2*qt
            pb = S(qt, 0) + 8*kt
            fm = [f"v_fma_f32 v{b+j}, v{b+j}, s64, v{30+2*qt}" for j in range(16)]
            ex = [f"v_exp_f32 v{b+j}, v{b+j}" for j in range(16)]
            ad = []
            for j in range(8):
                if kt == 0 and j == 0:
                    ad.append([f"v_add_f32 v{s0}, v{b}, v{b+2}", f"v_add_f32 v{s0+1}, v{b+1}, v{b+3}"])
                elif kt == 0 and j == 1:
                    ad.append([])
                else:
                    ad.append([f"v_add_f32 v{s0}, v{s0}, v{b+2*j}", f"v_add_f32 v{s0+1}, v{s0+1}, v{b+2*j+1}"])
            it += fm[:4]
            for j in range(16):
                it.append(ex[j])
                if j + 4 < 16: it.append(fm[j+4])
                if j >= 5 and (j & 1) == 1:
                    p = (j - 5) // 2
                    if not (kt == 0 and p == 0):
                        it += ad[p]
                        if kt == 0 and p == 1:
                            it += ad[0] + [f"v_cvt_pk_bf16_f32 v{pb}, v{b}, v{b+1}"]
                        it.append(f"v_cvt_pk_bf16_f32 v{pb+p}, v{b+2*p}, v{b+2*p+1}")
            for p in (6, 7):
                it += ad[p]
                it.append(f"v_cvt_pk_bf16_f32 v{pb+p}, v{b+2*p}, v{b+2*p+1}")
        return it
    def sum_fin(qt):
        s = 36 + 2*qt
        return [f"v_add_f32 v{s}, v{s}, v{s+1}", f"v_mov_b32 v{s+1}, v{s}", f"v_permlane32_swap_b32 v{s+1}, v{s}",
                f"v_add_f32 v{s}, v{s}, v{s+1}", f"v_mov_b32 v{s+1}, v{30+2*qt}"]
    def ml_write(qt):
        return [f"ds_write_b64 v23, {vr(36+2*qt, 2)} offset:{qt*256}"]
    VX = [23, 24, 31, 33]
    def ml_read(qt):
        return [f"ds_read_b64 {vr(44+2*t, 2)}, v{VX[t]} offset:{qt*256}" for t in range(4)]
    def ml_fin(qt):
        it = ["v_min3_f32 v20, v45, v47, v49", "v_min_f32 v20, v20, v51"]
        it += [f"v_sub_f32 v{52+t}, v20, v{45+2*t}" for t in range(4)]
        it += [f"v_exp_f32 v{52+t}, v{52+t}" for t in range(4)]
        it += ["v_mul_f32 v20, v52, v44"] + [f"v_fma_f32 v20, v{52+t}, v{44+2*t}, v20" for t in range(1, 4)]
        it += ["v_rcp_f32 v20, v20"] + [f"v_mul_f32 v{52+t}, v{52+t}, v20" for t in range(4)]
        return it
    PACC = [96, 160, 224]
    def acc(qt, t):
        if t == 0: return vr(PACC[qt], 16)
        if qt < 2: return ar(128 + 48*qt + 16*(t-1), 16)
        return vr([240, 112, 176][t-1], 16)
    def accq(qt, t, dw):
        if qt < 2: return ar(128 + 48*qt + 16*(t-1) + 4*dw, 4)
        return vr([240, 112, 176][t-1] + 4*dw, 4)
    def vreads(c):
        blk = KB[c]; win = (blk - 2) >> 2; boff = ((blk - 2) & 3) * 16384
        it = [lambda: em.wait_vtok(vtok[c])]
        return it + [f"ds_read_b64_tr_b16 {ar((c*4+t)*4+2*e, 2)}, v{VA[win][t]} offset:{boff+e*2048}" for t in range(4) for e in range(2)]
    def pv_mf(qt, c):
        return [f"{MF} {acc(qt, t)}, {ar((c*4+t)*4, 4)}, {vr(S(qt, 0)+4*c, 4)}, {'0' if c == 0 else acc(qt, t)}" for t in range(4)]
    RB = [(0, 1, 4), (8, 9, 7), (0, 1, 4)]
    def r_write(qt):
        it = []
        for t in range(1, 4):
            it.append(f"v_xor_b32 v{24+t}, {hex(RB[qt][t-1]*16384 + (t << 12))}, v35")
        for t in range(1, 4):
            it += [f"ds_write_b128 v{24+t}, {accq(qt, t, dw)} offset:{dw*1024}" for dw in range(4)]
        return it
    def r_reads(qt):
        ad = []; rd = []
        base = {}
        for t in range(1, 4):
            w = RB[qt][t-1] >> 2
            if w == 0: base[w] = 35
            elif w not in base:
                base[w] = 25 + len(ad)
                ad.append(f"v_add_u32 v{base[w]}, {hex(w*65536)}, v35")
        for i in range(12):
            dw, t = i // 3, 1 + i % 3
            blk = RB[qt][t-1]
            rd.append(f"ds_read_b128 {vr(S(qt, 0)+4*(i % 8), 4)}, v{base[blk >> 2]} offset:{(blk & 3)*16384+dw*1024}")
        return ad, rd
    def combine(qt):
        ad, rd = r_reads(qt)
        o = PACC[qt]
        pre = ml_read(qt) + ad + rd[:8]
        it = ml_fin(qt)
        it += [f"v_mul_f32 v{o+j}, v{o+j}, v52" for j in range(16)]
        for dw in range(4):
            for t in range(1, 4):
                i = dw*3 + t - 1
                it += [f"v_fma_f32 v{o+4*dw+j}, v{S(qt, 0)+4*(i % 8)+j}, v{52+t}, v{o+4*dw+j}" for j in range(4)]
                if i < 4: it.append(rd[8+i])
            it += [f"v_cvt_pk_bf16_f32 v{o+2*dw+j}, v{o+4*dw+2*j}, v{o+4*dw+2*j+1}" for j in range(2)]
            if dw & 1:
                e = dw >> 1
                it.append(f"buffer_store_dwordx4 {vr(o+4*e, 4)}, v28, s[36:39], s{[58,59,81][qt]} offen offset:{e*1024} sc1")
        return pre, it
    WB = [5, 2, 3, 5, 2, 3, 5, 2, 3, 8, 9, 7, 5, 2, 3, 8]
    wtok = {}
    def wa(g): return 224 + 16*g if g < 2 else (96 + 16*g if g < 8 else 16*(g-8))
    def wo_items(g):
        it = []
        for i in range(4):
            l = f"buffer_load_dwordx4 v{4+i}, s[68:71], s49 offen offset:{i*1024} lds"
            if i == 0:
                l = f"s_add_u32 s49, s86, {g*65536}\ns_add_u32 m0, s47, {WB[g]*16384}\n" + l
            it.append(l)
        def tok(): wtok[g] = em.vtok()
        it.append(tok)
        return it
    def wdrain_items(g):
        blk = WB[g]; seg = blk >> 2; boff = (blk & 3) * 16384
        it = [lambda: em.wait_vtok(wtok[g])]
        for k2 in range(2):
            for nt in range(2):
                for e in range(2):
                    it.append(f"ds_read_b64_tr_b16 {ar(wa(g)+(k2*2+nt)*4+2*e, 2)}, v{9+2*seg+nt} offset:{boff+k2*2048+e*512}")
        return it
    lg0 = lambda: em.wait(lg=0)
    touch = [f"""buffer_load_dword v61, v58, s[68:71], s86 offen
    v_add_u32 v58, {64*2048}, v58
    buffer_load_dword v62, v58, s[68:71], s86 offen
    buffer_load_dword v19, off, s[76:79], s83 sc1"""]
    S0, S1, S2 = s_mf(0), s_mf(1), s_mf(2)
    vlate = [c for c in range(8) if all(c not in cs for cs in ksched.values())]
    vl = {c: kv_items(c, True) for c in vlate}
    interleave(em, S0[:18], vl.pop(vlate[0]) if vlate else [])
    interleave(em, S0[18:], max_items(0, (0, 1)))
    interleave(em, S1[:2], [])
    interleave(em, S1[2:6], max_items(0, (2, 3)) + max_fin(0), lead=2)
    st.mark()
    E = exp_items(0)
    n1 = opt.get("n1", 120)
    rest = sum((vl.pop(c) for c in list(vl)), []) + touch
    f = list(S1[6:])
    ff = []
    for i, x in enumerate(f):
        ff.append(x)
        if i % 2 == 1 and rest: ff.append(rest.pop(0))
    ff += rest
    interleave(em, E[:n1], ff)
    interleave(em, E[n1:n1+8] + max_items(1, range(4)) + max_fin(1), S2[:8])
    interleave(em, E[n1+8:n1+48], S2[8:16])
    nb = opt.get("nb", 26)
    interleave(em, E[n1+48:] + sum_fin(0), weave2(S2[16:nb], vreads(0) + vreads(1)))
    st.mark()
    E = exp_items(1)
    interleave(em, E[:40], weave2(S2[nb:], vreads(2) + vreads(3)))
    interleave(em, E[40:60] + max_items(2, range(4)) + max_fin(2), pv_mf(0, 0) + pv_mf(0, 1))
    interleave(em, E[60:] + sum_fin(1), vreads(4) + pv_mf(0, 2) + pv_mf(0, 3) + pv_mf(0, 4))
    lg0b()
    st.mark()
    E = exp_items(2)
    fl = wo_items(0) + pv_mf(1, 0) + pv_mf(1, 1) + pv_mf(1, 2) + vreads(5) + pv_mf(1, 3) + pv_mf(1, 4) + pv_mf(0, 5) + wo_items(1) + pv_mf(1, 5)
    interleave(em, E + sum_fin(2), fl)
    st.mark()
    interleave(em, pv_mf(2, 0) + pv_mf(2, 1), vreads(6))
    interleave(em, pv_mf(2, 2) + pv_mf(0, 6), [])
    interleave(em, pv_mf(1, 6) + pv_mf(2, 3), wo_items(2))
    run(pv_mf(2, 4) + pv_mf(2, 5))
    interleave(em, pv_mf(2, 6), vreads(7))
    st.mark()
    run(pv_mf(0, 7))
    interleave(em, pv_mf(1, 7), ml_write(0) + ml_write(1) + ml_write(2))
    interleave(em, pv_mf(2, 7), r_write(0))
    run(r_write(1))
    run(wdrain_items(0) + wdrain_items(1))
    lg0b()
    st.mark()
    p0, c0 = combine(0)
    p1, c1 = combine(1)
    p2, c2 = combine(2)
    NS = 1 + max(i for i, x in enumerate(c0) if x.startswith("ds_read"))
    run(p0)
    run(wo_items(3) + wo_items(4))
    run(wdrain_items(2))
    run(c0[:NS])
    lg0b()
    run(wo_items(5))
    run(weave2(c0[NS:], r_write(2)))
    run(p1)
    run(wdrain_items(3) + wdrain_items(4))
    st.mark()
    RING = [96 + 4*i for i in range(8)] + [240 + 4*i for i in range(4)] + [192 + 4*i for i in range(12)]
    NR = 24
    ACC2 = [64, 128, 160]
    G = [(0,0),(0,1),(1,0),(1,1),(0,2),(0,3),(1,2),(1,3),(2,0),(2,1),(2,2),(2,3)]
    seq = [(qt, hh, ks) for (qt, hh) in G for ks in range(8)]
    def ooff(i):
        qt, hh, ks = seq[i]
        return hh*24576 + qt*8192 + (ks >> 2)*4096
    def oload(i, sreg=93):
        qt, hh, ks = seq[i]
        l = ""
        if (ks & 3) == 0:
            l = f"s_add_u32 s{sreg}, s87, {ooff(i)}\n"
        return l + f"buffer_load_dwordx4 {vr(RING[i % NR], 4)}, v21, s[36:39], s{sreg} offen offset:{(ks & 3)*1024} sc1"
    run(c1[:NS])
    lg0b()
    run(wo_items(6) + wo_items(7))
    run(c1[NS:])
    run(p2)
    em("v_readfirstlane_b32 s91, v19")
    em(f"s_movk_i32 s92, {SPIN}")
    em.raw(f"""    s_cmp_eq_u32 s91, 32
    s_cbranch_scc1 L_cnt_ok
L_cnt:
    buffer_load_dword v19, off, s[76:79], s83 sc1
    s_waitcnt vmcnt(0)
    v_readfirstlane_b32 s91, v19
    s_cmp_eq_u32 s91, 32
    s_cbranch_scc1 L_cnt_ok
    s_sleep 4
    s_sub_u32 s92, s92, 1
    s_cmp_lg_u32 s92, 0
    s_cbranch_scc1 L_cnt
L_cnt_ok:""")
    st.mark()
    pre_o = [oload(i) for i in range(NR)]
    run(pre_o[:8])
    run(weave2(c2, wo_items(9) + wo_items(10) + wo_items(11) + wdrain_items(5) + [lg0] + wo_items(8)))
    st.mark()
    run(pre_o[8:16])
    run(wdrain_items(6) + wdrain_items(7) + [lg0] + wo_items(12) + wo_items(13))
    run(pre_o[16:])
    em(f"""s_lshl_b32 s82, s84, 10
    v_add_u32 v16, s82, v22
    v_xor_b32 v17, 0x400, v16""")
    def red_writes(qt):
        base = (qt & 1)*32768
        return [f"ds_write_b128 v28, {vr(ACC2[qt]+16*nt+4*dw, 4)} offset:{base+dw*8192+nt*1024}" for nt in range(2) for dw in range(4)]
    def red_reads(qt):
        base = (qt & 1)*32768
        return [f"ds_read_b128 {vr(ACC2[qt]+16*t+src*4, 4)}, v{17-t} offset:{base+src*2048}" for t in range(2) for src in range(4)]
    def red_sum(qt):
        it = []
        for t in range(2):
            R = ACC2[qt] + 16*t
            for p in range(4):
                it.append(f"v_add_f32 v{R+p}, v{R+p}, v{R+4+p}")
                it.append(f"v_add_f32 v{R+8+p}, v{R+8+p}, v{R+12+p}")
            for p in range(4):
                it.append(f"v_add_f32 v{R+p}, v{R+p}, v{R+8+p}")
            if t == 0:
                it.append(f"buffer_store_dwordx4 {vr(R, 4)}, v21, s[36:39], s{[88,95,96][qt]} offen sc1")
        return it
    slow = []
    def chk_items(j):
        it = []
        for f in range(4):
            r = RING[(4*j+f) % NR]
            if f == 0:
                it.append(f"v_max3_u32 v20, v{r}, v{r+1}, v{r+2}")
                it.append(f"v_max_u32 v20, v20, v{r+3}")
            else:
                it.append(f"v_max3_u32 v20, v{r}, v{r+1}, v20")
                it.append(f"v_max3_u32 v20, v{r+2}, v{r+3}, v20")
        it.append("v_cmp_eq_u32 vcc, -1, v20")
        return it
    def chk_branch(j):
        em(f"s_cbranch_vccnz L_slow{j}")
        em.label(f"L_back{j}")
        t = [f"L_slow{j}:", f"    s_movk_i32 s92, {SPIN}", f"L_sl{j}:", "    s_sleep 2"]
        for f in range(4):
            t += ["    " + x for x in oload(4*j+f, 94).split("\n")]
        t.append("    s_waitcnt vmcnt(0)")
        t += ["    " + x for x in chk_items(j)]
        t += [f"    s_cbranch_vccz L_back{j}", "    s_sub_u32 s92, s92, 1", "    s_cmp_lg_u32 s92, 0", f"    s_cbranch_scc1 L_sl{j}", f"    s_branch L_back{j}"]
        slow.extend(t)
    run(chk_items(0))
    st.mark()
    extra2 = {1: wdrain_items(8) + wdrain_items(9) + [lg0] + wo_items(14) + wo_items(15), 3: wdrain_items(10) + wdrain_items(11),
              4: wdrain_items(12) + wdrain_items(13), 6: wdrain_items(14) + wdrain_items(15),
              12: red_writes(0), 14: red_reads(0), 15: red_sum(0),
              16: red_writes(1), 18: red_reads(1), 19: red_sum(1)}
    barr = {8, 14, 18}
    for j in range(24):
        chk_branch(j)
        if j in barr: lg0b()
        main = []
        for f in range(4):
            i = 4*j + f
            qt, hh, ks = seq[i]
            g = hh*4 + (ks >> 1)
            first = (hh == 0 and ks == 0)
            for nt in range(2):
                d = vr(ACC2[qt] + 16*nt, 16)
                l = f"{MF} {d}, {ar(wa(g) + ((ks & 1)*2+nt)*4, 4)}, {vr(RING[i % NR], 4)}, {'0' if first else d}"
                if nt == 1 and i + NR < len(seq):
                    l += "\n" + oload(i + NR)
                main.append(l)
        fill = list(extra2.get(j, []))
        ck = chk_items(j+1) if j < 23 else []
        interleave(em, main[:3], fill[:len(fill)//2])
        interleave(em, main[3:7], fill[len(fill)//2:] + ck)
        run(main[7:])
    st.mark()
    run(red_writes(2))
    lg0b()
    run(red_reads(2)); run(red_sum(2))
    st.mark()
    em(f"s_movk_i32 s92, {SPIN}")
    em.raw(f"""L_mb:
    buffer_load_dwordx4 v[96:99], v21, s[36:39], s80 offen sc1
    buffer_load_dwordx4 v[100:103], v21, s[36:39], s97 offen sc1
    buffer_load_dwordx4 v[104:107], v21, s[36:39], s98 offen sc1
    s_waitcnt vmcnt(0)
    v_max_u32 v108, v96, v97
    v_max3_u32 v108, v98, v99, v108
    v_max3_u32 v108, v100, v101, v108
    v_max3_u32 v108, v102, v103, v108
    v_max3_u32 v108, v104, v105, v108
    v_max3_u32 v108, v106, v107, v108
    v_cmp_eq_u32 vcc, -1, v108
    s_cbranch_vccz L_mb_ok
    s_sleep 1
    s_sub_u32 s92, s92, 1
    s_cmp_lg_u32 s92, 0
    s_cbranch_scc1 L_mb
L_mb_ok:""")
    em.vm = []
    st.mark()
    em(f"""s_add_u32 s93, s89, {32*2048}
    s_add_u32 s94, s89, {64*2048}""")
    for qt in range(3):
        K = ACC2[qt] + 16
        for p in range(2):
            em(f"v_pk_add_f32 {vr(K+2*p, 2)}, {vr(K+2*p, 2)}, {vr(96+4*qt+2*p, 2)}")
        for p in range(2):
            em(f"v_cvt_pk_bf16_f32 v{112+2*qt+p}, v{K+2*p}, v{K+2*p+1}")
        em(f"buffer_store_dwordx2 {vr(112+2*qt, 2)}, v60, s[72:75], s{[89,93,94][qt]} offen")
    st.mark()
    st.store(50, 36, 67, STAMP_OFF)
    em.label("L_end")
    em("s_endpgm")
    for l in slow: em.raw(l)
    em.raw('    s_endpgm')
    return em

def build(path, stamps=False, opt=None):
    e = fused(stamps, opt); print(path, "instrs", e.ninstr, "nops", e.nnop)
    open(path, "w").write(file_text([(NAME, 256, 256, 163840)], [kernel_text(NAME, e.text(), 512, 256)]))

if __name__ == "__main__":
    build("v5b.s"); build("v5b_st.s", stamps=True)
```

```python
import sys
import gen
from gen import *

NAME = "standalone__mha_block_cached__near_ridge_kernel"
FLAG_OFF = 8 << 20
MBOX_OFF = 9 << 20
SPIN = 20000
KB = [7, 8, 9, 4, 5, 2, 3, 6]
XS = 0x7800

def run_items(em, items):
    for x in items:
        x() if callable(x) else em(x)

def fused(stamps=False, opt=None):
    opt = opt or {}
    em = Em()
    st = StampsE(em, 63, 60, stamps)
    prologue(em, 256, "L_end")
    mapping(em)
    em("""s_lshl_b32 s54, s50, 3
    s_add_u32 s54, s54, s42
    s_lshl_b32 s57, s41, 5
    s_add_u32 s57, s57, s54
    s_lshl_b32 s58, s57, 17
    v_lshrrev_b32 v44, 4, v2
    v_lshl_add_u32 v49, v1, 4, v44
    v_lshlrev_b32 v49, 8, v49
    v_add_u32 v49, s58, v49
    v_mov_b32 v3, v49
    v_and_b32 v50, 15, v2""")
    for i in range(4):
        em(f"""v_add_u32 v51, {4*i}, v44
        v_xor_b32 v51, v51, v50
        v_lshl_add_u32 v{4+i}, v51, 4, v49""")
    em.wait(lg=0)
    srd(em, 28, 6, SZ_KV)
    KBK = [7, 8, 9, 3, 1, 2, 7, 8]
    ktok = {}; vtok = {}
    def kv_items(c, isv):
        srdn = 32 if isv else 28
        it = []
        for i in range(4):
            vo = 3 if isv else 4 + i
            l = f"buffer_load_dwordx4 v{vo}, s[{srdn}:{srdn+3}], s49 offen offset:{i*1024} nt lds"
            if i == 0:
                l = f"s_mov_b32 s49, {c*16384}\ns_add_u32 m0, s47, {(KB if isv else KBK)[c]*16384}\n" + l
            it.append(l)
        def tok(): (vtok if isv else ktok)[c] = em.vtok()
        it.append(tok)
        return it
    st.init()
    st.mark()
    for c in range(6):
        run_items(em, kv_items(c, False))
    lane_common(em)
    em("""s_lshl_b32 s55, s54, 8
    s_mul_i32 s56, s41, 196608
    v_add_u32 v3, v3, v45""")
    em(f"""s_mul_i32 s80, s2, 12288
    s_lshl_b32 s82, s40, 10
    s_add_u32 s80, s80, s82
    s_add_u32 s80, s80, {MBOX_OFF}
    s_add_u32 s97, s80, 4096
    s_add_u32 s98, s80, 8192
    s_mul_i32 s58, s57, 24576
    s_add_u32 s59, s58, 8192
    s_add_u32 s81, s58, 16384
    v_mov_b32 v252, -1
    v_mov_b32 v253, -1
    v_mov_b32 v254, -1
    v_mov_b32 v255, -1
    v_lshl_add_u32 v28, v1, 11, v21""")
    srd(em, 36, 18, SZ_WS)
    clr = []
    for so in (58, 59, 81):
        for e in range(2):
            clr.append(f"buffer_store_dwordx4 v[252:255], v28, s[36:39], s{so} offen offset:{e*1024} sc1")
    for so in (80, 97, 98):
        clr.append(f"buffer_store_dwordx4 v[252:255], v21, s[36:39], s{so} offen sc1")
    gemm_setup(em, 8192, 55, "x")
    srd(em, 20, 4, SZ_X); srd(em, 24, 10, SZ_W)
    em("""v_and_b32 v50, 15, v2
    v_xor_b32 v49, v48, v50
    v_lshlrev_b32 v49, 4, v49
    v_lshl_add_u32 v49, v50, 8, v49
    v_lshl_add_u32 v49, v1, 12, v49
    v_bfe_u32 v51, v2, 4, 1""")
    for kt in range(4):
        d = (KBK[2*kt+1] - KBK[2*kt]) * 16384
        em(f"""v_mul_i32_i24 v52, {d if -16 <= d <= 64 else hex(d & 0xffffffff)}, v51
        v_add_u32 v52, v49, v52
        v_add_u32 v{9+kt}, {KBK[2*kt]*16384}, v52""")
    def kdrain_items(kt):
        it = []
        def w(): em.wait_vtok(ktok[2*kt+1])
        it.append(w)
        for ks in range(8):
            if ks == 0:
                it.append(f"ds_read_b128 {ar(32*kt, 4)}, v{9+kt}")
            else:
                it.append(f"v_xor_b32 v{12+ks}, {ks*32}, v{9+kt}\nds_read_b128 {ar(32*kt+4*ks, 4)}, v{12+ks}")
        return it
    lg0 = lambda: em.wait(lg=0)
    pre = {0: kdrain_items(0) + [lg0] + kv_items(6, False) + kv_items(7, False),
           1: kdrain_items(1) + kdrain_items(2) + [lg0]}
    ksched = opt.get("vsched", {11: [0, 1], 12: [2], 13: [3], 15: [4]})
    extra = {s: sum((kv_items(c, True) for c in cs), []) for s, cs in ksched.items()}
    def arrive():
        em.raw("""    s_cmp_lg_u32 s40, 0
    s_cbranch_scc1 L_noarr
    s_mov_b64 exec, 1
    buffer_atomic_add v29, off, s[76:79], s83 sc1
    s_mov_b64 exec, -1
L_noarr:
    s_nop 4""")
    extra[0] = kdrain_items(3) + extra.get(0, [])
    csched = opt.get("csched", [1, 2, 3, 4, 5, 6, 7, 8, 9])
    for s, c in zip(csched, clr):
        extra[s] = [c] + extra.get(s, [])
    sa = max(csched) + 4
    assert sa <= 15
    extra[sa] = [arrive] + extra.get(sa, [])
    body = gemm_phase(em, st, 24, 20, 19, 128, None, 56, "x", extra=extra, pre=pre)
    srd(em, 32, 8, SZ_KV)
    srd(em, 68, 12, SZ_W); srd(em, 72, 14, SZ_OUT); srd(em, 76, 16, 256)
    em("""v_mov_b32 v29, 1
    s_lshl_b32 s83, s41, 5""")
    em("""v_lshl_add_u32 v49, v48, 2, v47
    v_lshl_add_u32 v8, v49, 8, v46
    v_add_u32 v42, 0x10000, v8
    v_add_u32 v43, 0x20000, v8""")
    em(f"""v_lshl_add_u32 v22, v1, 13, v21
    v_and_b32 v49, 31, v2
    v_lshlrev_b32 v49, 4, v49
    v_add_u32 v24, {XS}, v49
    v_lshl_add_u32 v23, v1, 2, v24
    s_mov_b32 s64, {f32hex(C_SCALE)}
    s_mov_b32 s65, {f32hex(C_SCALE)}
    s_mov_b32 s66, {f32hex(-C_SCALE)}""")
    em(f"""s_bfe_u32 s84, s2, 0x10001
    s_xor_b32 s84, s84, 1
    s_and_b32 s85, s2, 1
    s_lshl_b32 s85, s85, 3
    s_add_u32 s85, s85, s42
    s_lshl_b32 s86, s84, 22
    s_lshl_b32 s82, s85, 7
    s_add_u32 s86, s86, s82
    s_lshl_b32 s87, s41, 5
    s_lshl_b32 s82, s84, 4
    s_add_u32 s87, s87, s82
    s_lshl_b32 s82, s40, 2
    s_add_u32 s87, s87, s82
    s_mul_i32 s87, s87, 24576
    s_xor_b32 s88, s2, 2
    s_mul_i32 s88, s88, 12288
    s_lshl_b32 s82, s40, 10
    s_add_u32 s88, s88, s82
    s_add_u32 s88, s88, {MBOX_OFF}
    s_add_u32 s95, s88, 4096
    s_add_u32 s96, s88, 8192
    s_mul_i32 s89, s41, 196608
    s_lshl_b32 s82, s85, 7
    s_add_u32 s89, s89, s82
    s_lshl_b32 s82, s84, 6
    s_add_u32 s89, s89, s82
    s_lshr_b32 s82, s40, 1
    s_lshl_b32 s82, s82, 5
    s_add_u32 s89, s89, s82
    s_and_b32 s82, s40, 1
    s_lshl_b32 s82, s82, 3
    s_add_u32 s89, s89, s82
    v_lshl_add_u32 v49, v48, 3, v47
    v_lshlrev_b32 v49, 7, v49
    v_and_b32 v50, 63, v46
    v_add_u32 v49, v49, v50
    v_bfe_u32 v50, v2, 3, 1
    v_lshl_add_u32 v49, v50, 6, v49
    v_lshl_add_u32 v56, v1, 12, v49
    v_lshrrev_b32 v49, 3, v2
    v_lshl_add_u32 v49, v1, 9, v49
    v_lshlrev_b32 v49, 11, v49
    v_and_b32 v50, 7, v2
    v_bfe_u32 v51, v2, 4, 1
    v_lshlrev_b32 v51, 2, v51
    v_xor_b32 v50, v50, v51
    v_lshl_add_u32 v57, v50, 4, v49
    s_lshl_b32 s82, s53, 9
    v_lshl_add_u32 v49, v1, 7, v2
    v_add_u32 v49, s82, v49
    v_lshlrev_b32 v58, 11, v49
    v_bfe_u32 v49, v2, 2, 2
    v_and_b32 v50, 3, v2
    v_lshlrev_b32 v50, 2, v50
    v_lshl_add_u32 v59, v49, 7, v50
    v_and_b32 v49, 31, v2
    v_lshlrev_b32 v49, 11, v49
    v_lshl_add_u32 v60, v48, 4, v49""")
    body()
    st.mark()
    def run(items): run_items(em, items)
    lg0b = lambda: (em.wait(lg=0), em.barrier())
    for qt in range(3):
        b = ACC + 16*qt
        for j in range(8):
            em(f"v_cvt_pk_bf16_f32 v{b+j}, v{b+2*j}, v{b+2*j+1}")
        for e in range(2):
            em(f"ds_write_b128 v28, {vr(b+4*e, 4)} offset:{qt*8192+e*1024}")
    for i in range(4):
        em(f"v_add_u32 v{4+i}, {i*(16384-1024)}, v57")
    for seg in range(3):
        em(f"""v_add_u32 v{9+2*seg}, {seg*65536}, v56
        v_xor_b32 v{10+2*seg}, 64, v{9+2*seg}""")
    em(f"""v_add_u32 v15, {KB[0]*16384}, v22
    v_add_u32 v16, {KB[0]*16384}, v21
    v_add_u32 v17, {KB[3]*16384}, v22
    v_add_u32 v18, {KB[3]*16384}, v21""")
    lg0b()
    for qt in range(3):
        for ks in range(8):
            em(f"ds_read_b128 {ar(128+(qt*8+ks)*4, 4)}, v21 offset:{(qt*8+ks)*1024}")
    st.mark()
    def S(qt, kt): return 64 + (qt*4 + kt)*16
    def s_mf(qt):
        it = []
        for kp in range(2):
            for ks in range(8):
                for kt in (2*kp, 2*kp+1):
                    d = vr(S(qt, kt), 16)
                    it.append(f"{MF} {d}, {ar(32*kt+4*ks, 4)}, {ar(128+(qt*8+ks)*4, 4)}, {'0' if ks == 0 else d}")
        return it
    def max_items(qt, kts):
        it = []
        m = 25 + qt
        for kt in kts:
            b = S(qt, kt)
            for j in range(8):
                if kt == 0 and j == 0:
                    it.append(f"v_max_f32 v{m}, v{b}, v{b+1}")
                else:
                    it.append(f"v_max3_f32 v{m}, v{b+2*j}, v{b+2*j+1}, v{m}")
        return it
    def max_send(qt):
        m = 25 + qt
        return [f"""v_mov_b32 v20, v{m}
        v_permlane32_swap_b32 v20, v{m}
        v_max_f32 v{m}, v20, v{m}
        ds_write_b32 v23, v{m} offset:{qt*512}"""]
    def max_read(qt):
        return [f"ds_read_b128 {vr(44+4*qt, 4)}, v24 offset:{qt*512}"]
    def max_fin(qt):
        t = 44 + 4*qt
        return [f"""v_max3_f32 v{t}, v{t}, v{t+1}, v{t+2}
        v_max_f32 v{t}, v{t}, v{t+3}
        v_mul_f32 v{30+2*qt}, s66, v{t}
        v_mul_f32 v{31+2*qt}, s66, v{t}"""]
    def exp_items(qt):
        it = []
        sm = vr(36+2*qt, 2)
        for kt in range(4):
            b = S(qt, kt)
            s0 = 36 + 2*qt
            fm = [f"v_fma_f32 v{b+j}, v{b+j}, s64, v{30+2*qt}" for j in range(16)]
            ex = [f"v_exp_f32 v{b+j}, v{b+j}" for j in range(16)]
            ad = []
            for j in range(8):
                if kt == 0 and j == 0:
                    ad.append([f"v_add_f32 v{s0}, v{b}, v{b+2}", f"v_add_f32 v{s0+1}, v{b+1}, v{b+3}"])
                elif kt == 0 and j == 1:
                    ad.append([])
                else:
                    ad.append([f"v_add_f32 v{s0}, v{s0}, v{b+2*j}", f"v_add_f32 v{s0+1}, v{s0+1}, v{b+2*j+1}"])
            it += fm[:4]
            for j in range(16):
                it.append(ex[j])
                if j + 4 < 16: it.append(fm[j+4])
                if j >= 5 and (j & 1) == 1:
                    p = (j - 5) // 2
                    if not (kt == 0 and p == 0):
                        it += ad[p]
                        if kt == 0 and p == 1:
                            it += ad[0] + [f"v_cvt_pk_bf16_f32 v{b}, v{b}, v{b+1}"]
                        it.append(f"v_cvt_pk_bf16_f32 v{b+p}, v{b+2*p}, v{b+2*p+1}")
            for p in (6, 7):
                it += ad[p]
                it.append(f"v_cvt_pk_bf16_f32 v{b+p}, v{b+2*p}, v{b+2*p+1}")
        return it
    SUMOFF = [1536, 0, None]
    def sum_send(qt):
        s = 36 + 2*qt
        if qt < 2:
            w = f"ds_write_b32 v23, v{s} offset:{SUMOFF[qt]}"
        else:
            w = f"v_subrev_u32 v20, {XS}, v23\nds_write_b32 v20, v{s}"
        return [f"""v_add_f32 v{s}, v{s}, v{s+1}
        v_mov_b32 v{s+1}, v{s}
        v_permlane32_swap_b32 v{s+1}, v{s}
        v_add_f32 v{s}, v{s}, v{s+1}
        {w}"""]
    def sum_read(qt):
        if qt < 2:
            return [f"ds_read_b128 {vr(44+4*qt, 4)}, v24 offset:{SUMOFF[qt]}"]
        return [f"v_subrev_u32 v20, {XS}, v24\nds_read_b128 {vr(44+4*qt, 4)}, v20"]
    def sum_fin(qt):
        t = 44 + 4*qt
        return [f"v_add_f32 v{t}, v{t}, v{t+1}", f"v_add_f32 v{t+2}, v{t+2}, v{t+3}", f"v_add_f32 v{t}, v{t}, v{t+2}",
                f"v_rcp_f32 v{30+2*qt}, v{t}", f"v_mov_b32 v{31+2*qt}, v{30+2*qt}"]
    PW = [22, 15, 17]; PR = [21, 16, 18]
    def pwrite(qt, cs):
        return [f"ds_write_b128 v{PW[qt]}, {vr(S(qt, c >> 1)+4*(c & 1), 4)} offset:{c*1024}" for c in cs]
    PACC = [64, 128, 176]; PBUF = [80, 144, 192]
    def vreads(c):
        blk = KB[c]; va = [8, 42, 43][blk >> 2]; boff = (blk & 3) * 16384
        return [f"ds_read_b64_tr_b16 {ar((c*4+wp)*4+2*e, 2)}, v{va} offset:{boff+wp*4096+e*2048}" for wp in range(4) for e in range(2)]
    def preads(qt, c):
        return [f"ds_read_b128 {vr(PBUF[qt]+(c & 1)*16+wp*4, 4)}, v{PR[qt]} offset:{wp*8192+c*1024}" for wp in range(4)]
    def pv_mf(qt, c):
        d = vr(PACC[qt], 16)
        return [f"{MF} {d}, {ar((c*4+wp)*4, 4)}, {vr(PBUF[qt]+(c & 1)*16+wp*4, 4)}, {'0' if (c == 0 and wp == 0) else d}" for wp in range(4)]
    def vbar(c):
        return [lambda: (em.wait_vtok(vtok[c], lg=0), em.barrier())]
    WB = [KB[2], KB[5], KB[6], KB[7], 0, 1, KB[0], KB[1]] * 2
    wtok = {}
    def wa(g): return 128 + 16*g if g < 8 else 16*(g-8)
    def wo_items(g):
        it = []
        for i in range(4):
            l = f"buffer_load_dwordx4 v{4+i}, s[68:71], s49 offen offset:{i*1024} lds"
            if i == 0:
                l = f"s_add_u32 s49, s86, {g*65536}\ns_add_u32 m0, s47, {WB[g]*16384}\n" + l
            it.append(l)
        def tok(): wtok[g] = em.vtok()
        it.append(tok)
        return it
    def wdrain_items(g):
        blk = WB[g]; seg = blk >> 2; boff = (blk & 3) * 16384
        it = [lambda: em.wait_vtok(wtok[g])]
        for k2 in range(2):
            for nt in range(2):
                for e in range(2):
                    it.append(f"ds_read_b64_tr_b16 {ar(wa(g)+(k2*2+nt)*4+2*e, 2)}, v{9+2*seg+nt} offset:{boff+k2*2048+e*512}")
        return it
    lg0 = lambda: em.wait(lg=0)
    def publish(qt):
        b = PACC[qt]
        it = []
        for j in range(16):
            it.append(f"v_mul_f32 v{b+j}, v{b+j}, v{30+2*qt}")
        for j in range(8):
            it.append(f"v_cvt_pk_bf16_f32 v{b+j}, v{b+2*j}, v{b+2*j+1}")
            if j in (3, 7):
                e = j >> 2
                it.append(f"buffer_store_dwordx4 {vr(b+4*e, 4)}, v28, s[36:39], s{[58,59,81][qt]} offen offset:{e*1024} sc1")
        return it
    touch = [f"""buffer_load_dword v61, v58, s[68:71], s86 offen
    v_add_u32 v58, {64*2048}, v58
    buffer_load_dword v62, v58, s[68:71], s86 offen
    buffer_load_dword v19, off, s[76:79], s83 sc1"""]
    S0, S1, S2 = s_mf(0), s_mf(1), s_mf(2)
    vlate = [c for c in range(8) if all(c not in cs for cs in ksched.values())]
    vl = {c: kv_items(c, True) for c in vlate}
    interleave(em, S0[:18], vl.pop(vlate[0]) if vlate else [])
    interleave(em, S0[18:], max_items(0, (0, 1)))
    interleave(em, S1[:3], [])
    interleave(em, S1[3:5], max_items(0, (2, 3)) + max_send(0), lead=4)
    lg0b()
    run(max_read(0)); run(S1[5:8]); run(max_fin(0))
    st.mark()
    E = exp_items(0)
    n1 = opt.get("n1", 112)
    rest = sum((vl.pop(c) for c in list(vl)), []) + touch
    f = list(S1[8:])
    ff = []
    for i, x in enumerate(f):
        ff.append(x)
        if i % 2 == 1 and rest: ff.append(rest.pop(0))
    ff += rest
    interleave(em, E[:n1], ff)
    interleave(em, E[n1:n1+8] + max_items(1, range(4)) + max_send(1), S2[:8])
    interleave(em, E[n1+8:n1+18], S2[8:10])
    lg0b()
    run(max_read(1))
    nb = opt.get("nb", 26)
    interleave(em, E[n1+18:], S2[10:nb])
    run(sum_send(0)); run(max_fin(1))
    st.mark()
    E = exp_items(1)
    interleave(em, E[:40], S2[nb:] + pwrite(0, range(6)))
    interleave(em, E[40:48] + max_items(2, range(4)) + max_send(2), [])
    run(vbar(0))
    run(max_read(2))
    interleave(em, E[48:84], vreads(0) + preads(0, 0))
    run(vbar(1))
    interleave(em, E[84:130], vreads(1) + preads(0, 1) + pv_mf(0, 0))
    run(vbar(2))
    interleave(em, E[130:180], vreads(2) + preads(0, 2) + pv_mf(0, 1))
    interleave(em, E[180:], pv_mf(0, 2))
    run(sum_send(1)); run(max_fin(2))
    st.mark()
    E = exp_items(2)
    interleave(em, E[:12], pwrite(1, range(8)))
    run(vbar(3))
    interleave(em, E[12:62], sum_read(0) + sum_read(1) + preads(1, 0) + vreads(3) + preads(0, 3) + preads(1, 1) + wo_items(0) + pv_mf(1, 0) + pv_mf(0, 3))
    run(vbar(4))
    interleave(em, E[62:122], pwrite(0, (6, 7)) + vreads(4) + preads(0, 4) + pv_mf(1, 1) + preads(1, 2) + pv_mf(0, 4) + preads(1, 3) + pv_mf(1, 2))
    run(vbar(5))
    interleave(em, E[122:190], vreads(5) + preads(0, 5) + pv_mf(1, 3) + preads(1, 4) + pv_mf(0, 5) + preads(1, 5) + pv_mf(1, 4))
    interleave(em, E[190:] + sum_fin(0) + sum_fin(1), pv_mf(1, 5))
    run(sum_send(2))
    run(pwrite(2, range(8)))
    st.mark()
    run(vbar(6))
    run(vreads(6) + preads(0, 6) + preads(1, 6) + wo_items(1) + sum_read(2))
    run(pv_mf(0, 6))
    run(vbar(7))
    run(vreads(7) + preads(0, 7) + preads(1, 7))
    interleave(em, pv_mf(1, 6), preads(2, 0) + preads(2, 1) + wo_items(2))
    run(pv_mf(0, 7))
    lg0b()
    interleave(em, pv_mf(1, 7), wo_items(3) + wo_items(4) + sum_fin(2))
    interleave(em, pv_mf(2, 0), publish(0)[:14])
    interleave(em, pv_mf(2, 1), preads(2, 2) + publish(0)[14:] + wo_items(5))
    interleave(em, pv_mf(2, 2), preads(2, 3) + publish(1)[:16])
    interleave(em, pv_mf(2, 3), preads(2, 4) + publish(1)[16:] + wo_items(6))
    st.mark()
    RING = [192 + 4*i for i in range(16)] + [96 + 4*i for i in range(8)]
    NR = 24
    ACC2 = [64, 128, 160]
    G = [(0,0),(0,1),(1,0),(1,1),(0,2),(0,3),(1,2),(1,3),(2,0),(2,1),(2,2),(2,3)]
    seq = [(qt, hh, ks) for (qt, hh) in G for ks in range(8)]
    def ooff(i):
        qt, hh, ks = seq[i]
        return hh*24576 + qt*8192 + (ks >> 2)*4096
    def oload(i, sreg=93):
        qt, hh, ks = seq[i]
        l = ""
        if (ks & 3) == 0:
            l = f"s_add_u32 s{sreg}, s87, {ooff(i)}\n"
        return l + f"buffer_load_dwordx4 {vr(RING[i % NR], 4)}, v21, s[36:39], s{sreg} offen offset:{(ks & 3)*1024} sc1"
    interleave(em, pv_mf(2, 4), preads(2, 5) + wo_items(7) + wdrain_items(0))
    interleave(em, pv_mf(2, 5), preads(2, 6) + wdrain_items(1))
    interleave(em, pv_mf(2, 6), preads(2, 7) + wdrain_items(2) + [lg0] + wo_items(8) + wo_items(9))
    em("v_readfirstlane_b32 s91, v19")
    em(f"s_movk_i32 s92, {SPIN}")
    em.raw(f"""    s_cmp_eq_u32 s91, 32
    s_cbranch_scc1 L_cnt_ok
L_cnt:
    buffer_load_dword v19, off, s[76:79], s83 sc1
    s_waitcnt vmcnt(0)
    v_readfirstlane_b32 s91, v19
    s_cmp_eq_u32 s91, 32
    s_cbranch_scc1 L_cnt_ok
    s_sleep 4
    s_sub_u32 s92, s92, 1
    s_cmp_lg_u32 s92, 0
    s_cbranch_scc1 L_cnt
L_cnt_ok:""")
    interleave(em, pv_mf(2, 7), wdrain_items(3))
    run(publish(2))
    st.mark()
    pre_o = [oload(i) for i in range(NR)]
    run(pre_o[:8])
    run(wdrain_items(4) + wdrain_items(5) + [lg0] + wo_items(10) + wo_items(11) + wo_items(12) + wo_items(13))
    run(pre_o[8:16])
    run(wdrain_items(6) + wdrain_items(7) + [lg0] + wo_items(14) + wo_items(15))
    run(pre_o[16:])
    em(f"""s_lshl_b32 s82, s84, 10
    v_add_u32 v16, s82, v22
    v_xor_b32 v17, 0x400, v16""")
    def red_writes(qt):
        base = (qt & 1)*32768
        return [f"ds_write_b128 v28, {vr(ACC2[qt]+16*nt+4*dw, 4)} offset:{base+dw*8192+nt*1024}" for nt in range(2) for dw in range(4)]
    def red_reads(qt):
        base = (qt & 1)*32768
        return [f"ds_read_b128 {vr(ACC2[qt]+16*t+src*4, 4)}, v{17-t} offset:{base+src*2048}" for t in range(2) for src in range(4)]
    def red_sum(qt):
        it = []
        for t in range(2):
            R = ACC2[qt] + 16*t
            for p in range(4):
                it.append(f"v_add_f32 v{R+p}, v{R+p}, v{R+4+p}")
                it.append(f"v_add_f32 v{R+8+p}, v{R+8+p}, v{R+12+p}")
            for p in range(4):
                it.append(f"v_add_f32 v{R+p}, v{R+p}, v{R+8+p}")
            if t == 0:
                it.append(f"buffer_store_dwordx4 {vr(R, 4)}, v21, s[36:39], s{[88,95,96][qt]} offen sc1")
        return it
    slow = []
    def chk_items(j):
        it = []
        for f in range(4):
            r = RING[(4*j+f) % NR]
            if f == 0:
                it.append(f"v_max3_u32 v20, v{r}, v{r+1}, v{r+2}")
                it.append(f"v_max_u32 v20, v20, v{r+3}")
            else:
                it.append(f"v_max3_u32 v20, v{r}, v{r+1}, v20")
                it.append(f"v_max3_u32 v20, v{r+2}, v{r+3}, v20")
        it.append("v_cmp_eq_u32 vcc, -1, v20")
        return it
    def chk_branch(j):
        em(f"s_cbranch_vccnz L_slow{j}")
        em.label(f"L_back{j}")
        t = [f"L_slow{j}:", f"    s_movk_i32 s92, {SPIN}", f"L_sl{j}:", "    s_sleep 2"]
        for f in range(4):
            t += ["    " + x for x in oload(4*j+f, 94).split("\n")]
        t.append("    s_waitcnt vmcnt(0)")
        t += ["    " + x for x in chk_items(j)]
        t += [f"    s_cbranch_vccz L_back{j}", "    s_sub_u32 s92, s92, 1", "    s_cmp_lg_u32 s92, 0", f"    s_cbranch_scc1 L_sl{j}", f"    s_branch L_back{j}"]
        slow.extend(t)
    run(chk_items(0))
    st.mark()
    extra2 = {2: wdrain_items(8) + wdrain_items(9), 3: wdrain_items(10) + wdrain_items(11),
              4: wdrain_items(12) + wdrain_items(13), 5: wdrain_items(14) + wdrain_items(15),
              12: red_writes(0), 14: red_reads(0), 15: red_sum(0),
              16: red_writes(1), 18: red_reads(1), 19: red_sum(1)}
    barr = {8, 14, 18}
    for j in range(24):
        chk_branch(j)
        if j in barr: lg0b()
        main = []
        for f in range(4):
            i = 4*j + f
            qt, hh, ks = seq[i]
            g = hh*4 + (ks >> 1)
            first = (hh == 0 and ks == 0)
            for nt in range(2):
                d = vr(ACC2[qt] + 16*nt, 16)
                l = f"{MF} {d}, {ar(wa(g) + ((ks & 1)*2+nt)*4, 4)}, {vr(RING[i % NR], 4)}, {'0' if first else d}"
                if nt == 1 and i + NR < len(seq):
                    l += "\n" + oload(i + NR)
                main.append(l)
        fill = list(extra2.get(j, []))
        ck = chk_items(j+1) if j < 23 else []
        interleave(em, main[:3], fill[:len(fill)//2])
        interleave(em, main[3:7], fill[len(fill)//2:] + ck)
        run(main[7:])
    st.mark()
    run(red_writes(2))
    lg0b()
    run(red_reads(2)); run(red_sum(2))
    st.mark()
    em(f"s_movk_i32 s92, {SPIN}")
    em.raw(f"""L_mb:
    buffer_load_dwordx4 v[96:99], v21, s[36:39], s80 offen sc1
    buffer_load_dwordx4 v[100:103], v21, s[36:39], s97 offen sc1
    buffer_load_dwordx4 v[104:107], v21, s[36:39], s98 offen sc1
    s_waitcnt vmcnt(0)
    v_max_u32 v108, v96, v97
    v_max3_u32 v108, v98, v99, v108
    v_max3_u32 v108, v100, v101, v108
    v_max3_u32 v108, v102, v103, v108
    v_max3_u32 v108, v104, v105, v108
    v_max3_u32 v108, v106, v107, v108
    v_cmp_eq_u32 vcc, -1, v108
    s_cbranch_vccz L_mb_ok
    s_sleep 1
    s_sub_u32 s92, s92, 1
    s_cmp_lg_u32 s92, 0
    s_cbranch_scc1 L_mb
L_mb_ok:""")
    em.vm = []
    st.mark()
    em(f"""s_add_u32 s93, s89, {32*2048}
    s_add_u32 s94, s89, {64*2048}""")
    for qt in range(3):
        K = ACC2[qt] + 16
        for p in range(2):
            em(f"v_pk_add_f32 {vr(K+2*p, 2)}, {vr(K+2*p, 2)}, {vr(96+4*qt+2*p, 2)}")
        for p in range(2):
            em(f"v_cvt_pk_bf16_f32 v{112+2*qt+p}, v{K+2*p}, v{K+2*p+1}")
        em(f"buffer_store_dwordx2 {vr(112+2*qt, 2)}, v60, s[72:75], s{[89,93,94][qt]} offen")
    st.mark()
    st.store(50, 36, 67, STAMP_OFF)
    em.label("L_end")
    em("s_endpgm")
    for l in slow: em.raw(l)
    em.raw('    s_endpgm')
    return em

def build(path, stamps=False, opt=None):
    e = fused(stamps, opt); print(path, "instrs", e.ninstr, "nops", e.nnop)
    open(path, "w").write(file_text([(NAME, 256, 256, 163840)], [kernel_text(NAME, e.text(), 512, 256)]))

if __name__ == "__main__":
    build("v4b.s"); build("v4b_st.s", stamps=True)
    o = dict(vsched={3: [0], 6: [1], 9: [2], 13: [3], 15: [4]})
    build("v4c.s", opt=o); build("v4c_st.s", stamps=True, opt=o)
```
